```python
import torch

def _softmax(x, axis=-1):
    return torch.softmax(x, dim=axis)
def _gelu(x):
    return torch.nn.functional.gelu(x, approximate="tanh")
def _silu(x):
    return torch.nn.functional.silu(x)
def _sigmoid(x):
    return torch.sigmoid(x)
def _layernorm(x, axis=-1, eps=1e-5):
    m = x.mean(dim=axis, keepdim=True)
    v = x.var(dim=axis, keepdim=True, unbiased=False)
    return (x - m) / torch.sqrt(v + eps)
def _scatter_add(tgt, idx, src, axis=0):
    return tgt.clone().index_add_(axis, idx, src)
def _segment_sum(src, seg, n):
    out = torch.zeros((n,) + src.shape[1:], dtype=src.dtype)
    return out.index_add_(0, seg, src)
def _pad(x, pw):
    flat = tuple(v for pair in reversed(pw) for v in pair)
    return torch.nn.functional.pad(x, flat)

kernel_name = 'sequential_preLN__mha_block__mixer_s_mlp__prompt'

def setup_inputs():

    _w = (lambda a: (lambda t: t.to(torch.bfloat16) if t.is_floating_point() else t)(torch.as_tensor(a)))
    def _A_setup():
        B, S, D, H = 1, 2048, 576, 32
        return {
            "x": _w((lambda *s: torch.randn(*s, dtype=torch.bfloat16) * 0.05)(B, S, D)),
            "wqkv": _w((lambda *s: torch.randn(*s, dtype=torch.bfloat16) * 0.05)(D, 3 * D)),
            "wo": _w((lambda *s: torch.randn(*s, dtype=torch.bfloat16) * 0.05)(D, D)),
        }
    _A_in = _A_setup()

    def _B_setup():
        B, S, D, F = 1, 2048, 576, 4608
        return {
            "x":  _w((lambda *s: torch.randn(*s, dtype=torch.bfloat16) * 0.05)(B, S, D)),
            "w1": _w((lambda *s: torch.randn(*s, dtype=torch.bfloat16) * 3.2)(D, D) * (D ** -0.5)),
            "w2": _w((lambda *s: torch.randn(*s, dtype=torch.bfloat16) * 3.2)(D, D) * (D ** -0.5)),
            "w3": _w((lambda *s: torch.randn(*s, dtype=torch.bfloat16) * 3.2)(D, F) * (D ** -0.5)),
            "w4": _w((lambda *s: torch.randn(*s, dtype=torch.bfloat16) * 3.2)(F, D) * (F ** -0.5)),
        }
    _B_in = _B_setup()

    return {
        "A_x": _A_in["x"],
        "A_wqkv": _A_in["wqkv"],
        "A_wo": _A_in["wo"],
        "B_x": _B_in["x"],
        "B_w1": _B_in["w1"],
        "B_w2": _B_in["w2"],
        "B_w3": _B_in["w3"],
        "B_w4": _B_in["w4"],
    }

def reference(A_x, A_wqkv, A_wo, B_x, B_w1, B_w2, B_w3, B_w4):
    def _A_ref(x, wqkv, wo):
        B, S, D = x.shape
        H = 32
        Dh = D // H
        qkv = (lambda x, *d: x.permute(*d))((x @ wqkv).reshape(B, S, 3, H, Dh), 2, 0, 3, 1, 4)
        q, k, v = qkv[0], qkv[1], qkv[2]
        scores = torch.einsum("bhqd,bhkd->bhqk", q, k) * (Dh ** -0.5)
        p = _softmax(scores, axis=-1)
        o = torch.einsum("bhqk,bhkd->bhqd", p, v)
        return (lambda x, *d: x.permute(*d))(o, 0, 2, 1, 3).reshape(B, S, D) @ wo

    def _B_ref(x, w1, w2, w3, w4):
        B, S, D = x.shape
        h = _gelu(_layernorm(x, axis=-1) @ w1)
        c = D // 4
        g0 = _pad(h[:, :, 0*c:1*c], ((0, 0), (1, 0), (0, 0)))[:, :S, :]
        g1 = _pad(h[:, :, 1*c:2*c], ((0, 0), (0, 1), (0, 0)))[:, 1:, :]
        g2 = _pad(h[:, :, 2*c:3*c], ((0, 0), (2, 0), (0, 0)))[:, :S, :]
        g3 = _pad(h[:, :, 3*c:   ], ((0, 0), (0, 2), (0, 0)))[:, 2:, :]
        hs = torch.concatenate([g0, g1, g2, g3], axis=-1) @ w2
        x1 = x + hs
        h2 = _gelu(_layernorm(x1, axis=-1) @ w3) @ w4
        return x1 + h2

    x = A_x
    h = x + _A_ref(_layernorm(x, axis=-1), A_wqkv, A_wo)
    h2 = h + _B_ref(_layernorm(h, axis=-1), B_w1, B_w2, B_w3, B_w4)
    return h2
```

```python
import sys, math

S = 2048
D = 576
H = 32
DH = 18
F = 4608

ARG_X, ARG_WQKV, ARG_WO, ARG_BX, ARG_W1, ARG_W2, ARG_W3, ARG_W4, ARG_OUT, ARG_DBG, ARG_WS = [8 * i for i in range(11)]

WS_QKV = 0
SZ_QKV = S * 3 * D * 2
SZ_SD = S * D * 2
WS_O = WS_QKV + SZ_QKV
WS_H = WS_O + SZ_SD
WS_XB = WS_H + SZ_SD
WS_G = WS_XB + SZ_SD
WS_X1 = WS_G + SZ_SD
WS_H3 = WS_X1 + SZ_SD
SZ_H3 = S * F * 2
WS_PART = WS_H3 + SZ_H3
SPLITK = 4
SZ_PART = SPLITK * S * D * 4


class Asm:
    def __init__(self):
        self.L = []

    def __call__(self, s):
        self.L.append("    " + s)

    def label(self, s):
        self.L.append(s + ":")

    def raw(self, s):
        self.L.append(s)

    def text(self):
        return "\n".join(self.L) + "\n"


def magic_div(d, maxval):
    for sh in range(8, 32):
        mul = -(-(1 << sh) // d)
        if mul * maxval >= (1 << 32):
            break
        if all((x * mul) >> sh == x // d for x in range(maxval + 1)):
            return mul, sh
    raise ValueError("no magic for %d %d" % (d, maxval))


def srd(a, dst, ptr, off, size):
    if off:
        a(f"s_add_u32 s{dst}, s{ptr}, {off}")
        a(f"s_addc_u32 s{dst+1}, s{ptr+1}, 0")
    else:
        a(f"s_mov_b32 s{dst}, s{ptr}")
        a(f"s_mov_b32 s{dst+1}, s{ptr+1}")
    a(f"s_mov_b32 s{dst+2}, {size}")
    a(f"s_mov_b32 s{dst+3}, 0x00020000")


def kernel_footer(a, name, vgpr, sgpr, accum_offset=None):
    if accum_offset is None:
        accum_offset = (vgpr + 3) // 4 * 4
    a.raw(f""".section .rodata,"a"
.p2align 6
.amdhsa_kernel {name}
  .amdhsa_next_free_vgpr {vgpr}
  .amdhsa_next_free_sgpr {sgpr}
  .amdhsa_accum_offset {accum_offset}
  .amdhsa_group_segment_fixed_size 0
  .amdhsa_kernarg_size 88
  .amdhsa_user_sgpr_count 2
  .amdhsa_user_sgpr_kernarg_segment_ptr 1
  .amdhsa_system_sgpr_workgroup_id_x 1
.end_amdhsa_kernel
.text""")


def kernel_header(a, name):
    a.raw(f""".globl {name}
.p2align 8
.type {name},@function
{name}:""")


GELU_C0 = -2.0 * math.log2(math.e) * math.sqrt(2.0 / math.pi)
GELU_C1 = GELU_C0 * 0.044715


def f32hex(x):
    import struct
    return "0x%08x" % struct.unpack("<I", struct.pack("<f", x))[0]


def gen_gemm(a, name, *, K, N, BM, BN, a_arg, a_off, a_size, lda, w_arg, w_ldb,
             pro, epi, c_arg, c_off, c_size, ldc, splitk=1,
             r1=None, r2=None, xb_out=None, BK=64, use_agpr=False):
    assert BM % 32 == 0 and BN % 32 == 0 and K % (BK * splitk) == 0
    WM, WN = BM // 2, BN // 2
    MI, NJ = WM // 16, WN // 16
    NSUB = BK // 32
    KP = K // splitk
    NKT = KP // BK
    nbm, nbn = S // BM, N // BN
    NWG = nbm * nbn * splitk
    pitchA = BK * 2 + 32
    pitchB = BN * 2 + 32
    szA = BM * pitchA
    szB = BK * pitchB
    lds_stats = 0
    st_sz = BM * 16 if pro in ("ln", "lnln") else 0
    STG = szA + szB
    LDS_A = st_sz
    LDS_B = st_sz + szA
    lds_total = st_sz + 2 * STG
    assert st_sz + STG < 65536
    CPR_A = BK // 8
    NCA = BM * CPR_A // 256
    assert BM * CPR_A % 256 == 0
    CPR_B = BN // 8
    NCB_T = BK * CPR_B
    assert NCB_T % 256 == 0
    NCB = NCB_T // 256

    kernel_header(a, name)
    END = f"{name}_end"
    a(f"s_cmp_ge_u32 s2, {NWG}")
    a(f"s_cbranch_scc1 {END}")
    ptrs = {}
    nxt = [36]

    def getptr(arg):
        if arg not in ptrs:
            ptrs[arg] = nxt[0]
            a(f"s_load_dwordx2 s[{nxt[0]}:{nxt[0]+1}], s[0:1], {arg}")
            nxt[0] += 2
        return ptrs[arg]

    for arg in [a_arg, w_arg, c_arg] + ([r1[0]] if r1 else []) + ([r2[0]] if r2 else []) + ([xb_out[0]] if xb_out else []):
        getptr(arg)
    sKS, sBM, sBN, sT = 3, 4, 5, 6
    if splitk > 1:
        assert splitk & (splitk - 1) == 0
        a(f"s_and_b32 s{sKS}, s2, {splitk-1}")
        a(f"s_lshr_b32 s{sT}, s2, {int(math.log2(splitk))}")
    else:
        a(f"s_mov_b32 s{sKS}, 0")
        a(f"s_mov_b32 s{sT}, s2")
    mul, sh = magic_div(nbn, NWG)
    a(f"s_mul_i32 s{sBM}, s{sT}, {mul}")
    a(f"s_lshr_b32 s{sBM}, s{sBM}, {sh}")
    a(f"s_mul_i32 s{sBN}, s{sBM}, {nbn}")
    a(f"s_sub_u32 s{sBN}, s{sT}, s{sBN}")
    a("s_waitcnt lgkmcnt(0)")
    sA, sW, sC, sR1, sR2, sXB = 8, 12, 16, 20, 24, 28
    srd(a, sA, ptrs[a_arg], a_off, a_size)
    srd(a, sW, ptrs[w_arg], 0, K * w_ldb)
    srd(a, sC, ptrs[c_arg], c_off, c_size)
    if r1:
        srd(a, sR1, ptrs[r1[0]], r1[1], r1[2])
    if r2:
        srd(a, sR2, ptrs[r2[0]], r2[1], r2[2])
    if xb_out:
        srd(a, sXB, ptrs[xb_out[0]], xb_out[1], xb_out[2])
    sM0, sN0, sKA, sKW = 32, 33, 34, 35
    a(f"s_mul_i32 s{sM0}, s{sBM}, {BM}")
    a(f"s_mul_i32 s{sN0}, s{sBN}, {BN}")
    a(f"s_mul_i32 s{sKA}, s{sKS}, {KP*2}")
    a(f"s_mul_i32 s{sKW}, s{sKS}, {KP*w_ldb}")

    nv = [1]

    def V(n=1, align=1):
        b = (nv[0] + align - 1) // align * align
        nv[0] = b + n
        return b

    vT0 = V(1)
    vT1 = V(1)
    vT2 = V(1)
    vT3 = V(1)
    vLane = V(1)
    vAoff = [V(1) for _ in range(NCA)]
    vAlds = V(1)
    vBoff = [V(1) for _ in range(NCB)]
    vBlds = [V(1) for _ in range(NCB)]
    vArd = V(1)
    vWrd = V(1)
    vCoff = V(1)
    if pro in ("ln", "lnln"):
        nst = 2 if pro == "ln" else 4
        vSt = [V(nst, 2) for _ in range(NCA)]
    if pro == "shift":
        vCol = V(1)
        vDel = V(1)
    vStgA = V(4 * NCA, 4)
    vStgB = V(4 * NCB, 4)
    vFA = V(4 * MI, 4)
    vFW = V(4 * NJ, 4)
    tmpbase = V(0, 4)
    if use_agpr:
        ACC = lambda i, j, r=0: f"a{(i*NJ+j)*4+r}"
        ACCR = lambda i, j: f"a[{(i*NJ+j)*4}:{(i*NJ+j)*4+3}]"
        accbase = None
    else:
        accbase = V(MI * NJ * 4, 4)
        ACC = lambda i, j, r=0: f"v{accbase+(i*NJ+j)*4+r}"
        ACCR = lambda i, j: f"v[{accbase+(i*NJ+j)*4}:{accbase+(i*NJ+j)*4+3}]"


    a(f"v_and_b32 v{vLane}, 63, v0")
    if pro in ("ln", "lnln"):
        rows_per_wave = BM // 4
        npass = rows_per_wave // 8
        dbase = vStgA
        assert nv[0] - vStgA >= 36
        vD = dbase
        vS = vT1; vQ = vT2; vU = vT3; vX = vT0
        vRow = vAlds
        vOff = vArd
        for p in range(npass):
            a(f"v_lshrrev_b32 v{vRow}, 6, v0")
            a(f"v_mul_u32_u24 v{vRow}, {rows_per_wave}, v{vRow}")
            a(f"v_lshrrev_b32 v{vOff}, 3, v{vLane}")
            a(f"v_add_u32 v{vRow}, v{vRow}, v{vOff}")
            if p:
                a(f"v_add_u32 v{vRow}, {p*8}, v{vRow}")
            a(f"v_add_u32 v{vOff}, s{sM0}, v{vRow}")
            a(f"v_mul_u32_u24 v{vOff}, {lda}, v{vOff}")
            a(f"v_and_b32 v{vX}, 7, v0")
            a(f"v_lshlrev_b32 v{vX}, 4, v{vX}")
            a(f"v_add_u32 v{vOff}, v{vOff}, v{vX}")
            for i in range(9):
                a(f"buffer_load_dwordx4 v[{vD+4*i}:{vD+4*i+3}], v{vOff}, s[{sA}:{sA+3}], 0 offen offset:{i*128}")
            a("s_waitcnt vmcnt(0)")

            def reduce8(v):
                a(f"s_nop 1")
                a(f"v_add_f32_dpp v{v}, v{v}, v{v} quad_perm:[1,0,3,2] row_mask:0xf bank_mask:0xf")
                a(f"s_nop 1")
                a(f"v_add_f32_dpp v{v}, v{v}, v{v} quad_perm:[2,3,0,1] row_mask:0xf bank_mask:0xf")
                a(f"s_nop 1")
                a(f"v_add_f32_dpp v{v}, v{v}, v{v} row_half_mirror row_mask:0xf bank_mask:0xf")

            def stats(mean_out, rstd_out):
                a(f"v_mov_b32 v{vS}, 0")
                for i in range(36):
                    a(f"v_lshlrev_b32 v{vU}, 16, v{vD+i}")
                    a(f"v_and_b32 v{vX}, 0xffff0000, v{vD+i}")
                    a(f"v_add_f32 v{vS}, v{vS}, v{vU}")
                    a(f"v_add_f32 v{vS}, v{vS}, v{vX}")
                reduce8(vS)
                a(f"v_mul_f32 v{vS}, {f32hex(1.0/D)}, v{vS}")
                a(f"v_mov_b32 v{vQ}, 0")
                for i in range(36):
                    a(f"v_lshlrev_b32 v{vU}, 16, v{vD+i}")
                    a(f"v_and_b32 v{vX}, 0xffff0000, v{vD+i}")
                    a(f"v_sub_f32 v{vU}, v{vU}, v{vS}")
                    a(f"v_sub_f32 v{vX}, v{vX}, v{vS}")
                    a(f"v_fmac_f32 v{vQ}, v{vU}, v{vU}")
                    a(f"v_fmac_f32 v{vQ}, v{vX}, v{vX}")
                reduce8(vQ)
                a(f"v_mul_f32 v{vQ}, {f32hex(1.0/D)}, v{vQ}")
                a(f"v_add_f32 v{vQ}, {f32hex(1e-5)}, v{vQ}")
                a(f"v_rsq_f32 v{vQ}, v{vQ}")
                a("s_nop 1")

            stats(None, None)
            a(f"v_mul_f32 v{vS}, v{vS}, v{vQ}")
            a(f"v_sub_f32 v{vS}, 0, v{vS}")
            a(f"v_lshlrev_b32 v{vX}, 4, v{vRow}")
            if pro == "ln":
                a(f"v_mov_b32 v{vU}, v{vQ}")
                a(f"ds_write_b64 v{vX}, v[{vQ}:{vQ+1}] offset:{lds_stats}") if False else None
                a(f"ds_write_b32 v{vX}, v{vQ} offset:{lds_stats}")
                a(f"ds_write_b32 v{vX}, v{vS} offset:{lds_stats+4}")
            else:
                a(f"ds_write_b32 v{vX}, v{vQ} offset:{lds_stats}")
                a(f"ds_write_b32 v{vX}, v{vS} offset:{lds_stats+4}")
                for i in range(36):
                    a(f"v_lshlrev_b32 v{vU}, 16, v{vD+i}")
                    a(f"v_and_b32 v{vX}, 0xffff0000, v{vD+i}")
                    a(f"v_fma_f32 v{vU}, v{vU}, v{vQ}, v{vS}")
                    a(f"v_fma_f32 v{vX}, v{vX}, v{vQ}, v{vS}")
                    a(f"v_cvt_pk_bf16_f32 v{vD+i}, v{vU}, v{vX}")
                if xb_out:
                    a(f"s_cmp_lg_u32 s{sBN}, 0")
                    a(f"s_cbranch_scc1 {name}_noxb{p}")
                    for i in range(9):
                        a(f"buffer_store_dwordx4 v[{vD+4*i}:{vD+4*i+3}], v{vOff}, s[{sXB}:{sXB+3}], 0 offen offset:{i*128}")
                    a.label(f"{name}_noxb{p}")
                stats(None, None)
                a(f"v_mul_f32 v{vS}, v{vS}, v{vQ}")
                a(f"v_sub_f32 v{vS}, 0, v{vS}")
                a(f"v_lshlrev_b32 v{vX}, 4, v{vRow}")
                a(f"ds_write_b32 v{vX}, v{vQ} offset:{lds_stats+8}")
                a(f"ds_write_b32 v{vX}, v{vS} offset:{lds_stats+12}")
                if xb_out:
                    a("s_waitcnt vmcnt(0)")
        a("s_waitcnt lgkmcnt(0)")
        a("s_barrier")

    lg = int(math.log2(CPR_A))
    RPI = 256 // CPR_A
    a(f"v_lshrrev_b32 v{vT0}, {lg}, v0")
    a(f"v_and_b32 v{vT1}, {CPR_A-1}, v0")
    a(f"v_lshlrev_b32 v{vT1}, 4, v{vT1}")
    a(f"v_mul_u32_u24 v{vAlds}, {pitchA}, v{vT0}")
    a(f"v_add_u32 v{vAlds}, v{vAlds}, v{vT1}")
    a(f"v_add_u32 v{vT2}, s{sM0}, v{vT0}")
    a(f"v_mul_u32_u24 v{vT2}, {lda}, v{vT2}")
    a(f"v_add_u32 v{vAoff[0]}, v{vT2}, v{vT1}")
    for i in range(1, NCA):
        a(f"v_add_u32 v{vAoff[i]}, {i*RPI*lda}, v{vAoff[0]}")
    if pro in ("ln", "lnln"):
        for i in range(NCA):
            a(f"v_lshlrev_b32 v{vT2}, 4, v{vT0}")
            if nst == 2:
                a(f"ds_read_b64 v[{vSt[i]}:{vSt[i]+1}], v{vT2} offset:{lds_stats + i*RPI*16}")
            else:
                a(f"ds_read_b128 v[{vSt[i]}:{vSt[i]+3}], v{vT2} offset:{lds_stats + i*RPI*16}")
    if pro == "shift":
        a(f"v_lshrrev_b32 v{vCol}, 1, v{vT1}")
    mulb, shb = magic_div(CPR_B, NCB_T)
    for i in range(NCB):
        a(f"v_add_u32 v{vT0}, {256*i}, v0")
        a(f"v_mul_u32_u24 v{vT1}, {mulb}, v{vT0}")
        a(f"v_lshrrev_b32 v{vT1}, {shb}, v{vT1}")
        a(f"v_mul_u32_u24 v{vT2}, {CPR_B}, v{vT1}")
        a(f"v_sub_u32 v{vT2}, v{vT0}, v{vT2}")
        a(f"v_lshlrev_b32 v{vT2}, 4, v{vT2}")
        a(f"v_mul_u32_u24 v{vBlds[i]}, {pitchB}, v{vT1}")
        a(f"v_add_u32 v{vBlds[i]}, v{vBlds[i]}, v{vT2}")
        a(f"v_mul_u32_u24 v{vBoff[i]}, {w_ldb}, v{vT1}")
        a(f"v_add_u32 v{vBoff[i]}, v{vBoff[i]}, v{vT2}")
        a(f"v_mov_b32 v{vT3}, s{sN0}")
        a(f"v_lshlrev_b32 v{vT3}, 1, v{vT3}")
        a(f"v_add_u32 v{vBoff[i]}, v{vBoff[i]}, v{vT3}")
    a(f"v_lshrrev_b32 v{vT0}, 7, v0")
    a(f"v_mul_u32_u24 v{vT0}, {WM}, v{vT0}")
    a(f"v_and_b32 v{vT1}, 15, v0")
    a(f"v_add_u32 v{vT0}, v{vT0}, v{vT1}")
    a(f"v_mul_u32_u24 v{vArd}, {pitchA}, v{vT0}")
    a(f"v_lshrrev_b32 v{vT1}, 4, v{vLane}")
    a(f"v_lshlrev_b32 v{vT2}, 4, v{vT1}")
    a(f"v_add_u32 v{vArd}, v{vArd}, v{vT2}")
    a(f"v_add_u32 v{vT0}, s{sM0}, v{vT0}")
    esz = 4 if epi == "partial" else 2
    a(f"v_mul_u32_u24 v{vCoff}, {ldc}, v{vT0}")
    a(f"v_lshrrev_b32 v{vT3}, 6, v0")
    a(f"v_and_b32 v{vT3}, 1, v{vT3}")
    a(f"v_mul_u32_u24 v{vT3}, {WN}, v{vT3}")
    a(f"v_lshlrev_b32 v{vT2}, 2, v{vT1}")
    a(f"v_add_u32 v{vT2}, v{vT2}, v{vT3}")
    a(f"v_add_u32 v{vT2}, s{sN0}, v{vT2}")
    a(f"v_mul_u32_u24 v{vT2}, {esz}, v{vT2}")
    a(f"v_add_u32 v{vCoff}, v{vCoff}, v{vT2}")
    if epi == "partial":
        a(f"s_mul_i32 s{sT}, s{sKS}, {S*ldc}")
        a(f"v_add_u32 v{vCoff}, s{sT}, v{vCoff}")
    a(f"v_and_b32 v{vT0}, 15, v0")
    a(f"v_lshrrev_b32 v{vT0}, 2, v{vT0}")
    a(f"v_lshlrev_b32 v{vT2}, 3, v{vT1}")
    a(f"v_add_u32 v{vT0}, v{vT0}, v{vT2}")
    a(f"v_mul_u32_u24 v{vWrd}, {pitchB}, v{vT0}")
    a(f"v_and_b32 v{vT0}, 3, v0")
    a(f"v_lshlrev_b32 v{vT0}, 3, v{vT0}")
    a(f"v_add_u32 v{vWrd}, v{vWrd}, v{vT0}")
    a(f"v_lshlrev_b32 v{vT3}, 1, v{vT3}")
    a(f"v_add_u32 v{vWrd}, v{vWrd}, v{vT3}")

    for i in range(MI):
        for j in range(NJ):
            for r in range(4):
                if use_agpr:
                    a(f"v_accvgpr_write_b32 {ACC(i,j,r)}, 0")
                else:
                    a(f"v_mov_b32 {ACC(i,j,r)}, 0")

    def emit_loads(kt):
        if pro == "shift":
            kbase = kt * BK
            a(f"v_add_u32 v{vT0}, {kbase}, v{vCol}")
            a(f"v_mov_b32 v{vDel}, {(-1*lda) & 0xffffffff}")
            for thr, dl in ((144, 1), (288, -2), (432, 2)):
                a(f"v_mov_b32 v{vT1}, {(dl*lda) & 0xffffffff}")
                a(f"v_cmp_le_u32 vcc, {thr}, v{vT0}")
                a("s_nop 1")
                a(f"v_cndmask_b32 v{vDel}, v{vDel}, v{vT1}, vcc")
            for i in range(NCA):
                a(f"v_add_u32 v{vT1}, v{vAoff[i]}, v{vDel}")
                a(f"buffer_load_dwordx4 v[{vStgA+4*i}:{vStgA+4*i+3}], v{vT1}, s[{sA}:{sA+3}], s{sKA} offen")
        else:
            for i in range(NCA):
                a(f"buffer_load_dwordx4 v[{vStgA+4*i}:{vStgA+4*i+3}], v{vAoff[i]}, s[{sA}:{sA+3}], s{sKA} offen")
        for i in range(NCB):
            a(f"buffer_load_dwordx4 v[{vStgB+4*i}:{vStgB+4*i+3}], v{vBoff[i]}, s[{sW}:{sW+3}], s{sKW} offen")
        a(f"s_add_u32 s{sKA}, s{sKA}, {BK*2}")
        a(f"s_add_u32 s{sKW}, s{sKW}, {BK*w_ldb}")

    def emit_stage(buf):
        a("s_waitcnt vmcnt(0)")
        if pro in ("ln", "lnln"):
            for i in range(NCA):
                for d in range(4):
                    r = vStgA + 4 * i + d
                    a(f"v_lshlrev_b32 v{vT0}, 16, v{r}")
                    a(f"v_and_b32 v{vT1}, 0xffff0000, v{r}")
                    a(f"v_fma_f32 v{vT0}, v{vT0}, v{vSt[i]}, v{vSt[i]+1}")
                    a(f"v_fma_f32 v{vT1}, v{vT1}, v{vSt[i]}, v{vSt[i]+1}")
                    a(f"v_cvt_pk_bf16_f32 v{r}, v{vT0}, v{vT1}")
                    if pro == "lnln":
                        a(f"v_lshlrev_b32 v{vT0}, 16, v{r}")
                        a(f"v_and_b32 v{vT1}, 0xffff0000, v{r}")
                        a(f"v_fma_f32 v{vT0}, v{vT0}, v{vSt[i]+2}, v{vSt[i]+3}")
                        a(f"v_fma_f32 v{vT1}, v{vT1}, v{vSt[i]+2}, v{vSt[i]+3}")
                        a(f"v_cvt_pk_bf16_f32 v{r}, v{vT0}, v{vT1}")
        for i in range(NCA):
            a(f"ds_write_b128 v{vAlds}, v[{vStgA+4*i}:{vStgA+4*i+3}] offset:{LDS_A + i*RPI*pitchA}")
        for i in range(NCB):
            a(f"ds_write_b128 v{vBlds[i]}, v[{vStgB+4*i}:{vStgB+4*i+3}] offset:{LDS_B}")
        dl = (STG if buf == 0 else -STG) & 0xffffffff
        for r in [vAlds] + vBlds:
            a(f"v_add_u32 v{r}, {dl}, v{r}")

    def emit_compute(buf):
        for s in range(NSUB):
            for i in range(MI):
                a(f"ds_read_b128 v[{vFA+4*i}:{vFA+4*i+3}], v{vArd} offset:{LDS_A + 16*i*pitchA + s*64}")
            for j in range(NJ):
                a(f"ds_read_b64_tr_b16 v[{vFW+4*j}:{vFW+4*j+1}], v{vWrd} offset:{LDS_B + 32*s*pitchB + 32*j}")
                a(f"ds_read_b64_tr_b16 v[{vFW+4*j+2}:{vFW+4*j+3}], v{vWrd} offset:{LDS_B + (32*s+4)*pitchB + 32*j}")
            a("s_waitcnt lgkmcnt(0)")
            for i in range(MI):
                for j in range(NJ):
                    a(f"v_mfma_f32_16x16x32_bf16 {ACCR(i,j)}, v[{vFW+4*j}:{vFW+4*j+3}], v[{vFA+4*i}:{vFA+4*i+3}], {ACCR(i,j)}")
        dl = (STG if buf == 0 else -STG) & 0xffffffff
        for r in [vArd, vWrd]:
            a(f"v_add_u32 v{r}, {dl}, v{r}")

    if pro in ("ln", "lnln"):
        a("s_waitcnt lgkmcnt(0)")
    emit_loads(0)
    emit_stage(0)
    if NKT > 1:
        emit_loads(1)
    a("s_waitcnt lgkmcnt(0)")
    a("s_barrier")
    for kt in range(NKT):
        buf = kt & 1
        emit_compute(buf)
        if kt + 1 < NKT:
            emit_stage(buf ^ 1)
            if kt + 2 < NKT:
                emit_loads(kt + 2)
            a("s_waitcnt lgkmcnt(0)")
            a("s_barrier")
    a("s_nop 7")
    a("s_nop 7")
    vE = vStgA
    assert 4 * NCA + 4 * NCB + 4 * MI + 4 * NJ >= 16
    for i in range(MI):
        if i:
            a(f"v_add_u32 v{vCoff}, {16*ldc}, v{vCoff}")
        for j in range(NJ):
            off = 16 * j * esz
            acc = [ACC(i, j, r) for r in range(4)]
            if use_agpr:
                for r in range(4):
                    a(f"v_accvgpr_read_b32 v{vE+8+r}, {acc[r]}")
                acc = [f"v{vE+8+r}" for r in range(4)]
            if epi == "partial":
                a(f"buffer_store_dwordx4 v[{vE+8}:{vE+11}], v{vCoff}, s[{sC}:{sC+3}], 0 offen offset:{off}") if use_agpr else \
                    a(f"buffer_store_dwordx4 {ACCR(i,j)}, v{vCoff}, s[{sC}:{sC+3}], 0 offen offset:{off}")
                if use_agpr:
                    a("s_nop 1")
                continue
            if epi == "gelu":
                a(f"v_cvt_pk_bf16_f32 v{vE+0}, {acc[0]}, {acc[1]}")
                a(f"v_cvt_pk_bf16_f32 v{vE+1}, {acc[2]}, {acc[3]}")
                xs = [vE + 2, vE + 3, vE + 4, vE + 5]
                a(f"v_lshlrev_b32 v{xs[0]}, 16, v{vE+0}")
                a(f"v_and_b32 v{xs[1]}, 0xffff0000, v{vE+0}")
                a(f"v_lshlrev_b32 v{xs[2]}, 16, v{vE+1}")
                a(f"v_and_b32 v{xs[3]}, 0xffff0000, v{vE+1}")
                ts = [vE + 12, vE + 13, vE + 14, vE + 15]
                a(f"s_mov_b32 s{sT}, {f32hex(GELU_C1)}")
                a(f"s_mov_b32 s{sT+1}, {f32hex(GELU_C0)}")
                for r in range(4):
                    a(f"v_mul_f32 v{ts[r]}, v{xs[r]}, v{xs[r]}")
                for r in range(4):
                    a(f"v_mov_b32 v{vE+6}, s{sT+1}")
                    a(f"v_fma_f32 v{ts[r]}, v{ts[r]}, s{sT}, v{vE+6}")
                for r in range(4):
                    a(f"v_mul_f32 v{ts[r]}, v{ts[r]}, v{xs[r]}")
                for r in range(4):
                    a(f"v_exp_f32 v{ts[r]}, v{ts[r]}")
                a("s_nop 0")
                for r in range(4):
                    a(f"v_add_f32 v{ts[r]}, 1.0, v{ts[r]}")
                for r in range(4):
                    a(f"v_rcp_f32 v{ts[r]}, v{ts[r]}")
                a("s_nop 0")
                for r in range(4):
                    a(f"v_mul_f32 v{ts[r]}, v{ts[r]}, v{xs[r]}")
                a(f"v_cvt_pk_bf16_f32 v{vE+0}, v{ts[0]}, v{ts[1]}")
                a(f"v_cvt_pk_bf16_f32 v{vE+1}, v{ts[2]}, v{ts[3]}")
            elif epi == "store":
                a(f"v_cvt_pk_bf16_f32 v{vE+0}, {acc[0]}, {acc[1]}")
                a(f"v_cvt_pk_bf16_f32 v{vE+1}, {acc[2]}, {acc[3]}")
            elif epi == "res1":
                a(f"buffer_load_dwordx2 v[{vE+2}:{vE+3}], v{vCoff}, s[{sR1}:{sR1+3}], 0 offen offset:{off}")
                a(f"v_cvt_pk_bf16_f32 v{vE+0}, {acc[0]}, {acc[1]}")
                a(f"v_cvt_pk_bf16_f32 v{vE+1}, {acc[2]}, {acc[3]}")
                a("s_waitcnt vmcnt(0)")
                for d in range(2):
                    a(f"v_lshlrev_b32 v{vE+4}, 16, v{vE+d}")
                    a(f"v_and_b32 v{vE+5}, 0xffff0000, v{vE+d}")
                    a(f"v_lshlrev_b32 v{vE+6}, 16, v{vE+2+d}")
                    a(f"v_and_b32 v{vE+7}, 0xffff0000, v{vE+2+d}")
                    a(f"v_add_f32 v{vE+4}, v{vE+4}, v{vE+6}")
                    a(f"v_add_f32 v{vE+5}, v{vE+5}, v{vE+7}")
                    a(f"v_cvt_pk_bf16_f32 v{vE+d}, v{vE+4}, v{vE+5}")
            a(f"buffer_store_dwordx2 v[{vE}:{vE+1}], v{vCoff}, s[{sC}:{sC+3}], 0 offen offset:{off}")
            a("s_nop 1")
    a("s_waitcnt vmcnt(0)")
    a.label(END)
    a("s_endpgm")
    nvg = nv[0]
    if use_agpr:
        accum = (nvg + 7) // 8 * 8
        kernel_footer(a, name, accum + MI * NJ * 4, 48, accum)
    else:
        kernel_footer(a, name, nvg, 48)
    return dict(name=name, grid=NWG, block=256, lds=lds_total, vgpr=nvg)


def gen_attn(a, name):
    KT = 64
    NIT = S // KT
    pK, pV = 80, 64
    szK, szV = KT * pK, KT * pV
    STG = szK + szV
    lds_total = 2 * STG
    SCALE = (DH ** -0.5) * math.log2(math.e)
    kernel_header(a, name)
    END = f"{name}_end"
    a(f"s_cmp_ge_u32 s2, {H * (S // 128)}")
    a(f"s_cbranch_scc1 {END}")
    a(f"s_load_dwordx2 s[4:5], s[0:1], {ARG_WS}")
    sH, sQB = 6, 7
    a(f"s_and_b32 s{sH}, s2, 31")
    a(f"s_lshr_b32 s{sQB}, s2, 5")
    a("s_waitcnt lgkmcnt(0)")
    sQ, sO = 8, 12
    srd(a, sQ, 4, WS_QKV, SZ_QKV)
    srd(a, sO, 4, WS_O, SZ_SD)
    sHB, sKoff, sC, sIt = 16, 17, 18, 19
    a(f"s_mul_i32 s{sHB}, s{sH}, {DH*2}")
    a(f"s_mov_b32 s{sC}, {f32hex(SCALE)}")
    vLane, vT0, vT1, vT2, vT3 = 1, 2, 3, 4, 5
    vGo4, vGo1 = 6, 7
    vW4, vW1 = 8, 9
    vKrd, vVrd = 10, 11
    vM, vAl, vMc = 12, 13, 14
    vOoff = 15
    vStg = 16
    vQf = 24
    vKf = 32
    vVf = 48
    vP = 64
    vSS = 80
    vO = 112
    NV = 128
    a(f"v_and_b32 v{vLane}, 63, v0")
    per = 2 * STG // 256
    assert per % 16 == 0 or True
    a(f"v_mov_b32 v{vStg}, 0")
    a(f"v_mov_b32 v{vStg+1}, 0")
    a(f"v_mov_b32 v{vStg+2}, 0")
    a(f"v_mov_b32 v{vStg+3}, 0")
    nch = (2 * STG) // 16
    for i in range(0, nch, 256):
        a(f"v_add_u32 v{vT0}, {i}, v0")
        a(f"v_lshlrev_b32 v{vT0}, 4, v{vT0}")
        if i + 256 > nch:
            a(f"v_cmp_gt_u32 vcc, {nch - i}, v0")
            a(f"s_and_saveexec_b64 s[20:21], vcc")
            a(f"ds_write_b128 v{vT0}, v[{vStg}:{vStg+3}]")
            a(f"s_mov_b64 exec, s[20:21]")
        else:
            a(f"ds_write_b128 v{vT0}, v[{vStg}:{vStg+3}]")
    a("s_waitcnt lgkmcnt(0)")
    a("s_barrier")
    a(f"v_cmp_gt_u32 vcc, 128, v0")
    a(f"s_and_saveexec_b64 s[20:21], vcc")
    a(f"v_lshrrev_b32 v{vT0}, 6, v0")
    a(f"v_mul_u32_u24 v{vT0}, {STG}, v{vT0}")
    a(f"v_mul_u32_u24 v{vT1}, {pV}, v{vLane}")
    a(f"v_add_u32 v{vT0}, v{vT0}, v{vT1}")
    a(f"v_mov_b32 v{vT1}, 0x3f80")
    a(f"ds_write_b16 v{vT0}, v{vT1} offset:{szK + 36}")
    a(f"s_mov_b64 exec, s[20:21]")
    a(f"v_lshrrev_b32 v{vT0}, 2, v0")
    a(f"v_and_b32 v{vT1}, 3, v0")
    a(f"v_mul_u32_u24 v{vGo4}, {3*D*2}, v{vT0}")
    a(f"v_add_u32 v{vGo4}, s{sHB}, v{vGo4}")
    a(f"v_lshrrev_b32 v{vT2}, 1, v{vT1}")
    a(f"v_mul_u32_u24 v{vT3}, {D*2}, v{vT2}")
    a(f"v_add_u32 v{vGo4}, v{vGo4}, v{vT3}")
    a(f"v_add_u32 v{vGo1}, {D*2 + 32}, v{vGo4}")
    a(f"v_and_b32 v{vT3}, 1, v{vT1}")
    a(f"v_lshlrev_b32 v{vT3}, 4, v{vT3}")
    a(f"v_add_u32 v{vGo4}, v{vGo4}, v{vT3}")
    a(f"v_add_u32 v{vGo4}, {D*2}, v{vGo4}")
    a(f"v_mul_u32_u24 v{vW4}, {pK}, v{vT0}")
    a(f"v_mul_u32_u24 v{vW1}, {pV}, v{vT0}")
    a(f"v_add_u32 v{vW1}, {szK}, v{vW1}")
    a(f"v_cmp_eq_u32 vcc, 1, v{vT2}")
    a("s_nop 1")
    a(f"v_cndmask_b32 v{vW4}, v{vW4}, v{vW1}, vcc")
    a(f"v_add_u32 v{vW1}, 32, v{vW4}")
    a(f"v_add_u32 v{vW4}, v{vW4}, v{vT3}")
    a(f"v_and_b32 v{vT0}, 31, v{vLane}")
    a(f"v_mul_u32_u24 v{vKrd}, {pK}, v{vT0}")
    a(f"v_lshrrev_b32 v{vT1}, 5, v{vLane}")
    a(f"v_lshlrev_b32 v{vT2}, 4, v{vT1}")
    a(f"v_add_u32 v{vKrd}, v{vKrd}, v{vT2}")
    a(f"v_and_b32 v{vT0}, 15, v{vLane}")
    a(f"v_lshrrev_b32 v{vT0}, 2, v{vT0}")
    a(f"v_lshlrev_b32 v{vT2}, 2, v{vT1}")
    a(f"v_add_u32 v{vT0}, v{vT0}, v{vT2}")
    a(f"v_mul_u32_u24 v{vVrd}, {pV}, v{vT0}")
    a(f"v_lshrrev_b32 v{vT0}, 4, v{vLane}")
    a(f"v_and_b32 v{vT0}, 1, v{vT0}")
    a(f"v_lshlrev_b32 v{vT0}, 5, v{vT0}")
    a(f"v_and_b32 v{vT2}, 3, v{vLane}")
    a(f"v_lshlrev_b32 v{vT2}, 3, v{vT2}")
    a(f"v_add_u32 v{vVrd}, v{vVrd}, v{vT0}")
    a(f"v_add_u32 v{vVrd}, v{vVrd}, v{vT2}")
    a(f"v_add_u32 v{vVrd}, {szK}, v{vVrd}")
    a(f"v_lshrrev_b32 v{vT0}, 6, v0")
    a(f"v_lshlrev_b32 v{vT0}, 5, v{vT0}")
    a(f"v_and_b32 v{vT2}, 31, v{vLane}")
    a(f"v_add_u32 v{vT0}, v{vT0}, v{vT2}")
    a(f"s_lshl_b32 s20, s{sQB}, 7")
    a(f"v_add_u32 v{vT0}, s20, v{vT0}")
    a(f"v_mul_u32_u24 v{vOoff}, {D*2}, v{vT0}")
    a(f"v_add_u32 v{vOoff}, s{sHB}, v{vOoff}")
    a(f"v_mul_u32_u24 v{vT0}, {3*D*2}, v{vT0}")
    a(f"v_add_u32 v{vT0}, s{sHB}, v{vT0}")
    a(f"v_lshlrev_b32 v{vT2}, 4, v{vT1}")
    a(f"v_add_u32 v{vT2}, v{vT0}, v{vT2}")
    a(f"buffer_load_dwordx4 v[{vQf}:{vQf+3}], v{vT2}, s[{sQ}:{sQ+3}], 0 offen")
    a(f"buffer_load_dword v{vQf+4}, v{vT0}, s[{sQ}:{sQ+3}], 0 offen offset:32")
    a(f"v_mov_b32 v{vQf+5}, 0")
    a(f"v_mov_b32 v{vQf+6}, 0")
    a(f"v_mov_b32 v{vQf+7}, 0")
    a("s_waitcnt vmcnt(0)")
    a(f"v_cmp_eq_u32 vcc, 0, v{vT1}")
    a("s_nop 1")
    a(f"v_cndmask_b32 v{vQf+4}, 0, v{vQf+4}, vcc")
    a(f"v_mov_b32 v{vM}, 0xff800000")
    for r in range(16):
        a(f"v_mov_b32 v{vO+r}, 0")
    a(f"s_mov_b32 s{sKoff}, 0")

    def loads():
        a(f"buffer_load_dwordx4 v[{vStg}:{vStg+3}], v{vGo4}, s[{sQ}:{sQ+3}], s{sKoff} offen")
        a(f"buffer_load_dword v{vStg+4}, v{vGo1}, s[{sQ}:{sQ+3}], s{sKoff} offen")
        a(f"s_add_u32 s{sKoff}, s{sKoff}, {KT*3*D*2}")

    def stage(buf):
        a("s_waitcnt vmcnt(0)")
        a(f"ds_write_b128 v{vW4}, v[{vStg}:{vStg+3}] offset:{buf*STG}")
        a(f"ds_write_b32 v{vW1}, v{vStg+4} offset:{buf*STG}")

    def compute(buf):
        B = buf * STG
        for kb in range(2):
            for dh in range(2):
                r = vKf + (kb * 2 + dh) * 4
                a(f"ds_read_b128 v[{r}:{r+3}], v{vKrd} offset:{B + kb*32*pK + dh*32}")
        for kb in range(4):
            r = vVf + kb * 4
            a(f"ds_read_b64_tr_b16 v[{r}:{r+1}], v{vVrd} offset:{B + kb*16*pV}")
            a(f"ds_read_b64_tr_b16 v[{r+2}:{r+3}], v{vVrd} offset:{B + (kb*16+8)*pV}")
        a("s_waitcnt lgkmcnt(8)")
        for kb in range(2):
            sr = vSS + kb * 16
            for dh in range(2):
                r = vKf + (kb * 2 + dh) * 4
                c = "0" if dh == 0 else f"v[{sr}:{sr+15}]"
                a(f"v_mfma_f32_32x32x16_bf16 v[{sr}:{sr+15}], v[{r}:{r+3}], v[{vQf+4*dh}:{vQf+4*dh+3}], {c}")
        a("s_nop 7")
        a("s_nop 3")
        a(f"v_max3_f32 v{vT0}, v{vSS}, v{vSS+1}, v{vSS+2}")
        for r in range(3, 31, 2):
            a(f"v_max3_f32 v{vT0}, v{vT0}, v{vSS+r}, v{vSS+r+1}")
        a(f"v_max_f32 v{vT0}, v{vT0}, v{vSS+31}")
        a(f"v_mov_b32 v{vT1}, v{vT0}")
        a("s_nop 1")
        a(f"v_permlane32_swap_b32 v{vT0}, v{vT1}")
        a("s_nop 1")
        a(f"v_max_f32 v{vT0}, v{vT0}, v{vT1}")
        a(f"v_max_f32 v{vT0}, v{vT0}, v{vM}")
        a(f"v_sub_f32 v{vT1}, v{vM}, v{vT0}")
        a(f"v_mul_f32 v{vT1}, s{sC}, v{vT1}")
        a(f"v_exp_f32 v{vAl}, v{vT1}")
        a(f"v_mov_b32 v{vM}, v{vT0}")
        a(f"v_mul_f32 v{vMc}, s{sC}, v{vT0}")
        for r in range(32):
            a(f"v_fma_f32 v{vSS+r}, v{vSS+r}, s{sC}, -v{vMc}")
        for r in range(32):
            a(f"v_exp_f32 v{vSS+r}, v{vSS+r}")
        for r in range(16):
            a(f"v_mul_f32 v{vO+r}, v{vO+r}, v{vAl}")
        for r in range(16):
            a(f"v_cvt_pk_bf16_f32 v{vP+r}, v{vSS+2*r}, v{vSS+2*r+1}")
        a("s_waitcnt lgkmcnt(0)")
        a("s_nop 1")
        for kb in range(4):
            a(f"v_mfma_f32_32x32x16_bf16 v[{vO}:{vO+15}], v[{vVf+4*kb}:{vVf+4*kb+3}], v[{vP+4*kb}:{vP+4*kb+3}], v[{vO}:{vO+15}]")

    loads()
    stage(0)
    loads()
    a("s_waitcnt lgkmcnt(0)")
    a("s_barrier")
    a(f"s_mov_b32 s{sIt}, 0")
    LOOP = f"{name}_loop"
    a.label(LOOP)
    compute(0)
    stage(1)
    loads()
    a("s_waitcnt lgkmcnt(0)")
    a("s_barrier")
    compute(1)
    a(f"s_add_u32 s{sIt}, s{sIt}, 2")
    a(f"s_cmp_ge_u32 s{sIt}, {NIT}")
    a(f"s_cbranch_scc1 {name}_fin")
    stage(0)
    loads()
    a("s_waitcnt lgkmcnt(0)")
    a("s_barrier")
    a(f"s_branch {LOOP}")
    a.label(f"{name}_fin")
    a("s_waitcnt vmcnt(0)")
    a("s_nop 7")
    a("s_nop 7")
    a(f"v_mov_b32 v{vT0}, v{vO+10}")
    a(f"v_mov_b32 v{vT1}, v{vO+10}")
    a("s_nop 1")
    a(f"v_permlane32_swap_b32 v{vT0}, v{vT1}")
    a("s_nop 1")
    a(f"v_rcp_f32 v{vT0}, v{vT0}")
    a("s_nop 0")
    for r in range(10):
        a(f"v_mul_f32 v{vO+r}, v{vO+r}, v{vT0}")
    for r in range(5):
        a(f"v_cvt_pk_bf16_f32 v{vP+r}, v{vO+2*r}, v{vO+2*r+1}")
    a(f"v_lshrrev_b32 v{vT1}, 5, v{vLane}")
    a(f"v_lshlrev_b32 v{vT1}, 3, v{vT1}")
    a(f"v_add_u32 v{vT1}, v{vOoff}, v{vT1}")
    a(f"buffer_store_dwordx2 v[{vP}:{vP+1}], v{vT1}, s[{sO}:{sO+3}], 0 offen")
    a(f"buffer_store_dwordx2 v[{vP+2}:{vP+3}], v{vT1}, s[{sO}:{sO+3}], 0 offen offset:16")
    a(f"v_cmp_gt_u32 vcc, 32, v{vLane}")
    a(f"s_and_saveexec_b64 s[20:21], vcc")
    a(f"buffer_store_dword v{vP+4}, v{vT1}, s[{sO}:{sO+3}], 0 offen offset:32")
    a("s_waitcnt vmcnt(0)")
    a.label(END)
    a("s_endpgm")
    kernel_footer(a, name, NV, 32)
    return dict(name=name, grid=H * (S // 128), block=256, lds=lds_total, vgpr=NV)


def gen_reduce(a, name):
    nthr = S * D // 8
    NWG = nthr // 256
    kernel_header(a, name)
    END = f"{name}_end"
    a(f"s_cmp_ge_u32 s2, {NWG}")
    a(f"s_cbranch_scc1 {END}")
    a(f"s_load_dwordx2 s[4:5], s[0:1], {ARG_WS}")
    a(f"s_load_dwordx2 s[6:7], s[0:1], {ARG_OUT}")
    a("s_waitcnt lgkmcnt(0)")
    srd(a, 8, 4, WS_PART, SZ_PART)
    srd(a, 12, 4, WS_H, SZ_SD)
    srd(a, 16, 4, WS_X1, SZ_SD)
    srd(a, 20, 6, 0, SZ_SD)
    a(f"s_lshl_b32 s24, s2, 8")
    a(f"v_add_u32 v1, s24, v0")
    a(f"v_lshlrev_b32 v2, 4, v1")
    a(f"v_lshlrev_b32 v3, 5, v1")
    for k in range(SPLITK):
        a(f"v_add_u32 v4, {k*S*D*4}, v3")
        a(f"buffer_load_dwordx4 v[{8+8*k}:{11+8*k}], v4, s[8:11], 0 offen")
        a(f"buffer_load_dwordx4 v[{12+8*k}:{15+8*k}], v4, s[8:11], 0 offen offset:16")
    a(f"buffer_load_dwordx4 v[40:43], v2, s[12:15], 0 offen")
    a(f"buffer_load_dwordx4 v[44:47], v2, s[16:19], 0 offen")
    a("s_waitcnt vmcnt(0)")
    for e in range(8):
        for k in range(1, SPLITK):
            a(f"v_add_f32 v{8+e}, v{8+e}, v{8+8*k+e}")
    for d in range(4):
        a(f"v_cvt_pk_bf16_f32 v48, v{8+2*d}, v{9+2*d}")
        a(f"v_lshlrev_b32 v49, 16, v48")
        a(f"v_and_b32 v50, 0xffff0000, v48")
        a(f"v_lshlrev_b32 v51, 16, v{44+d}")
        a(f"v_and_b32 v52, 0xffff0000, v{44+d}")
        a(f"v_add_f32 v49, v49, v51")
        a(f"v_add_f32 v50, v50, v52")
        a(f"v_cvt_pk_bf16_f32 v48, v49, v50")
        a(f"v_lshlrev_b32 v49, 16, v48")
        a(f"v_and_b32 v50, 0xffff0000, v48")
        a(f"v_lshlrev_b32 v51, 16, v{40+d}")
        a(f"v_and_b32 v52, 0xffff0000, v{40+d}")
        a(f"v_add_f32 v49, v49, v51")
        a(f"v_add_f32 v50, v50, v52")
        a(f"v_cvt_pk_bf16_f32 v{56+d}, v49, v50")
    a(f"buffer_store_dwordx4 v[56:59], v2, s[20:23], 0 offen")
    a("s_waitcnt vmcnt(0)")
    a.label(END)
    a("s_endpgm")
    kernel_footer(a, name, 64, 32)
    return dict(name=name, grid=NWG, block=256, lds=0, vgpr=64)


def main():
    a = Asm()
    launches = []
    launches.append(gen_gemm(a, "k_qkv_kernel", K=D, N=3 * D, BM=128, BN=96, a_arg=ARG_X, a_off=0, a_size=SZ_SD, lda=D * 2,
                             w_arg=ARG_WQKV, w_ldb=3 * D * 2, pro="ln", epi="store", c_arg=ARG_WS, c_off=WS_QKV,
                             c_size=SZ_QKV, ldc=3 * D * 2))
    launches.append(gen_attn(a, "k_attn_kernel"))
    launches.append(gen_gemm(a, "k_wo_kernel", K=D, N=D, BM=64, BN=64, a_arg=ARG_WS, a_off=WS_O, a_size=SZ_SD, lda=D * 2,
                             w_arg=ARG_WO, w_ldb=D * 2, pro=None, epi="res1", c_arg=ARG_WS, c_off=WS_H,
                             c_size=SZ_SD, ldc=D * 2, r1=(ARG_X, 0, SZ_SD)))
    launches.append(gen_gemm(a, "k_w1_kernel", K=D, N=D, BM=64, BN=64, a_arg=ARG_WS, a_off=WS_H, a_size=SZ_SD, lda=D * 2,
                             w_arg=ARG_W1, w_ldb=D * 2, pro="lnln", epi="gelu", c_arg=ARG_WS, c_off=WS_G,
                             c_size=SZ_SD, ldc=D * 2, xb_out=(ARG_WS, WS_XB, SZ_SD)))
    launches.append(gen_gemm(a, "k_w2_kernel", K=D, N=D, BM=64, BN=64, a_arg=ARG_WS, a_off=WS_G, a_size=SZ_SD, lda=D * 2,
                             w_arg=ARG_W2, w_ldb=D * 2, pro="shift", epi="res1", c_arg=ARG_WS, c_off=WS_X1,
                             c_size=SZ_SD, ldc=D * 2, r1=(ARG_WS, WS_XB, SZ_SD)))
    launches.append(gen_gemm(a, "k_w3_kernel", K=D, N=F, BM=128, BN=288, a_arg=ARG_WS, a_off=WS_X1, a_size=SZ_SD, lda=D * 2,
                             w_arg=ARG_W3, w_ldb=F * 2, pro="ln", epi="gelu", c_arg=ARG_WS, c_off=WS_H3,
                             c_size=SZ_H3, ldc=F * 2, use_agpr=True))
    launches.append(gen_gemm(a, "k_w4_kernel", K=F, N=D, BM=128, BN=192, a_arg=ARG_WS, a_off=WS_H3, a_size=SZ_H3, lda=F * 2,
                             w_arg=ARG_W4, w_ldb=D * 2, pro=None, epi="partial", c_arg=ARG_WS, c_off=WS_PART,
                             c_size=SZ_PART, ldc=D * 4, splitk=SPLITK, use_agpr=True))
    launches.append(gen_reduce(a, "sequential_preLN__mha_block__mixer_s_mlp__prompt_kernel"))
    hdr = ["; generated by dev/gen.py"]
    for l in launches:
        hdr.append(f"; @launch kernel={l['name']} grid=({l['grid']},1,1) block=({l['block']},1,1) lds={l['lds']}")
    hdr.append('.amdgcn_target "amdgcn-amd-amdhsa--gfx950"')
    hdr.append(".text")
    out = "\n".join(hdr) + "\n" + a.text()
    path = sys.argv[1] if len(sys.argv) > 1 else "out.s"
    open(path, "w").write(out)
    for l in launches:
        print(l)


if __name__ == "__main__":
    main()
```

```python
import sys, math

import os
INSTR = int(os.environ.get('INSTR', '0'))
S = 2048
D = 576
H = 32
DH = 18
F = 4608

ARG_X, ARG_WQKV, ARG_WO, ARG_BX, ARG_W1, ARG_W2, ARG_W3, ARG_W4, ARG_OUT, ARG_DBG, ARG_WS = [8 * i for i in range(11)]

WS_QKV = 0
SZ_QKV = S * 3 * D * 2
SZ_SD = S * D * 2
WS_O = WS_QKV + SZ_QKV
WS_H = WS_O + SZ_SD
WS_XB = WS_H + SZ_SD
WS_G = WS_XB + SZ_SD
WS_X1 = WS_G + SZ_SD
WS_H3 = WS_X1 + SZ_SD
SZ_H3 = S * F * 2
WS_PART = WS_H3 + SZ_H3
SPLITK = 4
SZ_PART = SPLITK * S * D * 4


class Asm:
    def __init__(self):
        self.L = []

    def __call__(self, s):
        self.L.append("    " + s)

    def label(self, s):
        self.L.append(s + ":")

    def raw(self, s):
        self.L.append(s)

    def text(self):
        return "\n".join(self.L) + "\n"


def magic_div(d, maxval):
    for sh in range(8, 32):
        mul = -(-(1 << sh) // d)
        if mul * maxval >= (1 << 32):
            break
        if all((x * mul) >> sh == x // d for x in range(maxval + 1)):
            return mul, sh
    raise ValueError("no magic for %d %d" % (d, maxval))


def srd(a, dst, ptr, off, size):
    if off:
        a(f"s_add_u32 s{dst}, s{ptr}, {off}")
        a(f"s_addc_u32 s{dst+1}, s{ptr+1}, 0")
    else:
        a(f"s_mov_b32 s{dst}, s{ptr}")
        a(f"s_mov_b32 s{dst+1}, s{ptr+1}")
    a(f"s_mov_b32 s{dst+2}, {size}")
    a(f"s_mov_b32 s{dst+3}, 0x00020000")


def kernel_footer(a, name, vgpr, sgpr, accum_offset=None):
    if accum_offset is None:
        accum_offset = (vgpr + 3) // 4 * 4
    a.raw(f""".section .rodata,"a"
.p2align 6
.amdhsa_kernel {name}
  .amdhsa_next_free_vgpr {vgpr}
  .amdhsa_next_free_sgpr {sgpr}
  .amdhsa_accum_offset {accum_offset}
  .amdhsa_group_segment_fixed_size 0
  .amdhsa_kernarg_size 88
  .amdhsa_user_sgpr_count 2
  .amdhsa_user_sgpr_kernarg_segment_ptr 1
  .amdhsa_system_sgpr_workgroup_id_x 1
.end_amdhsa_kernel
.text""")


def kernel_header(a, name):
    a.raw(f""".globl {name}
.p2align 8
.type {name},@function
{name}:""")


GELU_C0 = -2.0 * math.log2(math.e) * math.sqrt(2.0 / math.pi)
GELU_C1 = GELU_C0 * 0.044715


def f32hex(x):
    import struct
    return "0x%08x" % struct.unpack("<I", struct.pack("<f", x))[0]


def gen_gemm(a, name, *, K, N, BM, BN, a_arg, a_off, a_size, lda, w_arg, w_ldb,
             pro, epi, c_arg, c_off, c_size, ldc, splitk=1,
             r1=None, r2=None, xb_out=None, BK=64, use_agpr=False, PD=1):
    assert BM % 32 == 0 and BN % 32 == 0 and K % (BK * splitk) == 0
    WM, WN = BM // 2, BN // 2
    MI, NJ = WM // 16, WN // 16
    NSUB = BK // 32
    KP = K // splitk
    NKT = KP // BK
    nbm, nbn = S // BM, N // BN
    NWG = nbm * nbn * splitk
    pitchA = BK * 2 + 32
    pitchB = BN * 2 + 32
    szA = BM * pitchA
    szB = BK * pitchB
    lds_stats = 0
    st_sz = BM * 16 if pro in ("ln", "lnln") else 0
    STG = szA + szB
    LDS_A = st_sz
    LDS_B = st_sz + szA
    lds_total = st_sz + 2 * STG
    assert st_sz + STG < 65536
    CPR_A = BK // 8
    NCA = BM * CPR_A // 256
    assert BM * CPR_A % 256 == 0
    CPR_B = BN // 8
    NCB_T = BK * CPR_B
    assert NCB_T % 256 == 0
    NCB = NCB_T // 256

    kernel_header(a, name)
    END = f"{name}_end"
    a(f"s_cmp_ge_u32 s2, {NWG}")
    a(f"s_cbranch_scc1 {END}")
    tsn = [0]

    def stamp():
        if INSTR:
            a(f"s_memtime s[{60+2*tsn[0]}:{61+2*tsn[0]}]")
            tsn[0] += 1
    stamp()
    ptrs = {}
    nxt = [36]

    def getptr(arg):
        if arg not in ptrs:
            ptrs[arg] = nxt[0]
            a(f"s_load_dwordx2 s[{nxt[0]}:{nxt[0]+1}], s[0:1], {arg}")
            nxt[0] += 2
        return ptrs[arg]

    for arg in [a_arg, w_arg, c_arg] + ([r1[0]] if r1 else []) + ([r2[0]] if r2 else []) + ([xb_out[0]] if xb_out else []):
        getptr(arg)
    sKS, sBM, sBN, sT = 3, 4, 5, 6
    if splitk > 1:
        assert splitk & (splitk - 1) == 0
        a(f"s_and_b32 s{sKS}, s2, {splitk-1}")
        a(f"s_lshr_b32 s{sT}, s2, {int(math.log2(splitk))}")
    else:
        a(f"s_mov_b32 s{sKS}, 0")
        a(f"s_mov_b32 s{sT}, s2")
    mul, sh = magic_div(nbn, NWG)
    a(f"s_mul_i32 s{sBM}, s{sT}, {mul}")
    a(f"s_lshr_b32 s{sBM}, s{sBM}, {sh}")
    a(f"s_mul_i32 s{sBN}, s{sBM}, {nbn}")
    a(f"s_sub_u32 s{sBN}, s{sT}, s{sBN}")
    a("s_waitcnt lgkmcnt(0)")
    sA, sW, sC, sR1, sR2, sXB = 8, 12, 16, 20, 24, 28
    srd(a, sA, ptrs[a_arg], a_off, a_size)
    srd(a, sW, ptrs[w_arg], 0, K * w_ldb)
    srd(a, sC, ptrs[c_arg], c_off, c_size)
    if r1:
        srd(a, sR1, ptrs[r1[0]], r1[1], r1[2])
    if r2:
        srd(a, sR2, ptrs[r2[0]], r2[1], r2[2])
    if xb_out:
        srd(a, sXB, ptrs[xb_out[0]], xb_out[1], xb_out[2])
    sM0, sN0, sKA, sKW = 32, 33, 34, 35
    a(f"s_mul_i32 s{sM0}, s{sBM}, {BM}")
    a(f"s_mul_i32 s{sN0}, s{sBN}, {BN}")
    a(f"s_mul_i32 s{sKA}, s{sKS}, {KP*2}")
    a(f"s_mul_i32 s{sKW}, s{sKS}, {KP*w_ldb}")

    nv = [1]

    def V(n=1, align=1):
        b = (nv[0] + align - 1) // align * align
        nv[0] = b + n
        return b

    vT0 = V(1)
    vT1 = V(1)
    vT2 = V(1)
    vT3 = V(1)
    vLane = V(1)
    vAoff = [V(1) for _ in range(NCA)]
    vAlds = V(1)
    vBoff = [V(1) for _ in range(NCB)]
    vBlds = [V(1) for _ in range(NCB)]
    vArd = V(1)
    vWrd = V(1)
    vCoff = V(1)
    if pro in ("ln", "lnln"):
        nst = 2 if pro == "ln" else 4
        vSt = [V(nst, 2) for _ in range(NCA)]
    if pro == "shift":
        vCol = V(1)
        vDel = V(1)
    vStgA = V(4 * NCA, 4)
    vStgB = V(4 * NCB, 4)
    if PD == 2:
        vStgA2 = V(4 * NCA, 4)
        vStgB2 = V(4 * NCB, 4)
    else:
        vStgA2, vStgB2 = vStgA, vStgB
    vFA = [V(4 * MI, 4), V(4 * MI, 4)]
    vFW = [V(4 * NJ, 4), V(4 * NJ, 4)]
    tmpbase = V(0, 4)
    if use_agpr:
        ACC = lambda i, j, r=0: f"a{(i*NJ+j)*4+r}"
        ACCR = lambda i, j: f"a[{(i*NJ+j)*4}:{(i*NJ+j)*4+3}]"
        accbase = None
    else:
        accbase = V(MI * NJ * 4, 4)
        ACC = lambda i, j, r=0: f"v{accbase+(i*NJ+j)*4+r}"
        ACCR = lambda i, j: f"v[{accbase+(i*NJ+j)*4}:{accbase+(i*NJ+j)*4+3}]"


    a(f"v_and_b32 v{vLane}, 63, v0")
    if pro in ("ln", "lnln"):
        rows_per_wave = BM // 4
        npass = rows_per_wave // 8
        dbase = vStgA
        assert nv[0] - vStgA >= 36
        vD = dbase
        vS = vT1; vQ = vT2; vU = vT3; vX = vT0
        vRow = vAlds
        vOff = vArd
        for p in range(npass):
            a(f"v_lshrrev_b32 v{vRow}, 6, v0")
            a(f"v_mul_u32_u24 v{vRow}, {rows_per_wave}, v{vRow}")
            a(f"v_lshrrev_b32 v{vOff}, 3, v{vLane}")
            a(f"v_add_u32 v{vRow}, v{vRow}, v{vOff}")
            if p:
                a(f"v_add_u32 v{vRow}, {p*8}, v{vRow}")
            a(f"v_add_u32 v{vOff}, s{sM0}, v{vRow}")
            a(f"v_mul_u32_u24 v{vOff}, {lda}, v{vOff}")
            a(f"v_and_b32 v{vX}, 7, v0")
            a(f"v_lshlrev_b32 v{vX}, 4, v{vX}")
            a(f"v_add_u32 v{vOff}, v{vOff}, v{vX}")
            for i in range(9):
                a(f"buffer_load_dwordx4 v[{vD+4*i}:{vD+4*i+3}], v{vOff}, s[{sA}:{sA+3}], 0 offen offset:{i*128}")
            a("s_waitcnt vmcnt(0)")

            def reduce8(v):
                a(f"s_nop 1")
                a(f"v_add_f32_dpp v{v}, v{v}, v{v} quad_perm:[1,0,3,2] row_mask:0xf bank_mask:0xf")
                a(f"s_nop 1")
                a(f"v_add_f32_dpp v{v}, v{v}, v{v} quad_perm:[2,3,0,1] row_mask:0xf bank_mask:0xf")
                a(f"s_nop 1")
                a(f"v_add_f32_dpp v{v}, v{v}, v{v} row_half_mirror row_mask:0xf bank_mask:0xf")

            def stats(mean_out, rstd_out):
                a(f"v_mov_b32 v{vS}, 0")
                for i in range(36):
                    a(f"v_lshlrev_b32 v{vU}, 16, v{vD+i}")
                    a(f"v_and_b32 v{vX}, 0xffff0000, v{vD+i}")
                    a(f"v_add_f32 v{vS}, v{vS}, v{vU}")
                    a(f"v_add_f32 v{vS}, v{vS}, v{vX}")
                reduce8(vS)
                a(f"v_mul_f32 v{vS}, {f32hex(1.0/D)}, v{vS}")
                a(f"v_mov_b32 v{vQ}, 0")
                for i in range(36):
                    a(f"v_lshlrev_b32 v{vU}, 16, v{vD+i}")
                    a(f"v_and_b32 v{vX}, 0xffff0000, v{vD+i}")
                    a(f"v_sub_f32 v{vU}, v{vU}, v{vS}")
                    a(f"v_sub_f32 v{vX}, v{vX}, v{vS}")
                    a(f"v_fmac_f32 v{vQ}, v{vU}, v{vU}")
                    a(f"v_fmac_f32 v{vQ}, v{vX}, v{vX}")
                reduce8(vQ)
                a(f"v_mul_f32 v{vQ}, {f32hex(1.0/D)}, v{vQ}")
                a(f"v_add_f32 v{vQ}, {f32hex(1e-5)}, v{vQ}")
                a(f"v_rsq_f32 v{vQ}, v{vQ}")
                a("s_nop 1")

            stats(None, None)
            a(f"v_mul_f32 v{vS}, v{vS}, v{vQ}")
            a(f"v_sub_f32 v{vS}, 0, v{vS}")
            a(f"v_lshlrev_b32 v{vX}, 4, v{vRow}")
            if pro == "ln":
                a(f"v_mov_b32 v{vU}, v{vQ}")
                a(f"ds_write_b64 v{vX}, v[{vQ}:{vQ+1}] offset:{lds_stats}") if False else None
                a(f"ds_write_b32 v{vX}, v{vQ} offset:{lds_stats}")
                a(f"ds_write_b32 v{vX}, v{vS} offset:{lds_stats+4}")
            else:
                a(f"ds_write_b32 v{vX}, v{vQ} offset:{lds_stats}")
                a(f"ds_write_b32 v{vX}, v{vS} offset:{lds_stats+4}")
                for i in range(36):
                    a(f"v_lshlrev_b32 v{vU}, 16, v{vD+i}")
                    a(f"v_and_b32 v{vX}, 0xffff0000, v{vD+i}")
                    a(f"v_fma_f32 v{vU}, v{vU}, v{vQ}, v{vS}")
                    a(f"v_fma_f32 v{vX}, v{vX}, v{vQ}, v{vS}")
                    a(f"v_cvt_pk_bf16_f32 v{vD+i}, v{vU}, v{vX}")
                if xb_out:
                    a(f"s_cmp_lg_u32 s{sBN}, 0")
                    a(f"s_cbranch_scc1 {name}_noxb{p}")
                    for i in range(9):
                        a(f"buffer_store_dwordx4 v[{vD+4*i}:{vD+4*i+3}], v{vOff}, s[{sXB}:{sXB+3}], 0 offen offset:{i*128}")
                    a.label(f"{name}_noxb{p}")
                stats(None, None)
                a(f"v_mul_f32 v{vS}, v{vS}, v{vQ}")
                a(f"v_sub_f32 v{vS}, 0, v{vS}")
                a(f"v_lshlrev_b32 v{vX}, 4, v{vRow}")
                a(f"ds_write_b32 v{vX}, v{vQ} offset:{lds_stats+8}")
                a(f"ds_write_b32 v{vX}, v{vS} offset:{lds_stats+12}")
                if xb_out:
                    a("s_waitcnt vmcnt(0)")
        a("s_waitcnt lgkmcnt(0)")
        a("s_barrier")

    stamp()
    lg = int(math.log2(CPR_A))
    RPI = 256 // CPR_A
    a(f"v_lshrrev_b32 v{vT0}, {lg}, v0")
    a(f"v_and_b32 v{vT1}, {CPR_A-1}, v0")
    a(f"v_lshlrev_b32 v{vT1}, 4, v{vT1}")
    a(f"v_mul_u32_u24 v{vAlds}, {pitchA}, v{vT0}")
    a(f"v_add_u32 v{vAlds}, v{vAlds}, v{vT1}")
    a(f"v_add_u32 v{vT2}, s{sM0}, v{vT0}")
    a(f"v_mul_u32_u24 v{vT2}, {lda}, v{vT2}")
    a(f"v_add_u32 v{vAoff[0]}, v{vT2}, v{vT1}")
    for i in range(1, NCA):
        a(f"v_add_u32 v{vAoff[i]}, {i*RPI*lda}, v{vAoff[0]}")
    if pro in ("ln", "lnln"):
        for i in range(NCA):
            a(f"v_lshlrev_b32 v{vT2}, 4, v{vT0}")
            if nst == 2:
                a(f"ds_read_b64 v[{vSt[i]}:{vSt[i]+1}], v{vT2} offset:{lds_stats + i*RPI*16}")
            else:
                a(f"ds_read_b128 v[{vSt[i]}:{vSt[i]+3}], v{vT2} offset:{lds_stats + i*RPI*16}")
    if pro == "shift":
        a(f"v_lshrrev_b32 v{vCol}, 1, v{vT1}")
    mulb, shb = magic_div(CPR_B, NCB_T)
    for i in range(NCB):
        a(f"v_add_u32 v{vT0}, {256*i}, v0")
        a(f"v_mul_u32_u24 v{vT1}, {mulb}, v{vT0}")
        a(f"v_lshrrev_b32 v{vT1}, {shb}, v{vT1}")
        a(f"v_mul_u32_u24 v{vT2}, {CPR_B}, v{vT1}")
        a(f"v_sub_u32 v{vT2}, v{vT0}, v{vT2}")
        a(f"v_lshlrev_b32 v{vT2}, 4, v{vT2}")
        a(f"v_mul_u32_u24 v{vBlds[i]}, {pitchB}, v{vT1}")
        a(f"v_add_u32 v{vBlds[i]}, v{vBlds[i]}, v{vT2}")
        a(f"v_mul_u32_u24 v{vBoff[i]}, {w_ldb}, v{vT1}")
        a(f"v_add_u32 v{vBoff[i]}, v{vBoff[i]}, v{vT2}")
        a(f"v_mov_b32 v{vT3}, s{sN0}")
        a(f"v_lshlrev_b32 v{vT3}, 1, v{vT3}")
        a(f"v_add_u32 v{vBoff[i]}, v{vBoff[i]}, v{vT3}")
    a(f"v_lshrrev_b32 v{vT0}, 7, v0")
    a(f"v_mul_u32_u24 v{vT0}, {WM}, v{vT0}")
    a(f"v_and_b32 v{vT1}, 15, v0")
    a(f"v_add_u32 v{vT0}, v{vT0}, v{vT1}")
    a(f"v_mul_u32_u24 v{vArd}, {pitchA}, v{vT0}")
    a(f"v_lshrrev_b32 v{vT1}, 4, v{vLane}")
    a(f"v_lshlrev_b32 v{vT2}, 4, v{vT1}")
    a(f"v_add_u32 v{vArd}, v{vArd}, v{vT2}")
    a(f"v_add_u32 v{vT0}, s{sM0}, v{vT0}")
    esz = 4 if epi == "partial" else 2
    a(f"v_mul_u32_u24 v{vCoff}, {ldc}, v{vT0}")
    a(f"v_lshrrev_b32 v{vT3}, 6, v0")
    a(f"v_and_b32 v{vT3}, 1, v{vT3}")
    a(f"v_mul_u32_u24 v{vT3}, {WN}, v{vT3}")
    a(f"v_lshlrev_b32 v{vT2}, 2, v{vT1}")
    a(f"v_add_u32 v{vT2}, v{vT2}, v{vT3}")
    a(f"v_add_u32 v{vT2}, s{sN0}, v{vT2}")
    a(f"v_mul_u32_u24 v{vT2}, {esz}, v{vT2}")
    a(f"v_add_u32 v{vCoff}, v{vCoff}, v{vT2}")
    if epi == "partial":
        a(f"s_mul_i32 s{sT}, s{sKS}, {S*ldc}")
        a(f"v_add_u32 v{vCoff}, s{sT}, v{vCoff}")
    a(f"v_and_b32 v{vT0}, 15, v0")
    a(f"v_lshrrev_b32 v{vT0}, 2, v{vT0}")
    a(f"v_lshlrev_b32 v{vT2}, 3, v{vT1}")
    a(f"v_add_u32 v{vT0}, v{vT0}, v{vT2}")
    a(f"v_mul_u32_u24 v{vWrd}, {pitchB}, v{vT0}")
    a(f"v_and_b32 v{vT0}, 3, v0")
    a(f"v_lshlrev_b32 v{vT0}, 3, v{vT0}")
    a(f"v_add_u32 v{vWrd}, v{vWrd}, v{vT0}")
    a(f"v_lshlrev_b32 v{vT3}, 1, v{vT3}")
    a(f"v_add_u32 v{vWrd}, v{vWrd}, v{vT3}")

    for i in range(MI):
        for j in range(NJ):
            for r in range(4):
                if use_agpr:
                    a(f"v_accvgpr_write_b32 {ACC(i,j,r)}, 0")
                else:
                    a(f"v_mov_b32 {ACC(i,j,r)}, 0")

    vStgA_, vStgB_ = vStgA, vStgB

    def loads_stream(kt):
        X = []
        A_ = X.append
        vStgA, vStgB = (vStgA_, vStgB_) if (kt & 1) == 0 else (vStgA2, vStgB2)
        if pro == "shift":
            kbase = kt * BK
            A_(f"v_add_u32 v{vT0}, {kbase}, v{vCol}")
            A_(f"v_mov_b32 v{vDel}, {(-1*lda) & 0xffffffff}")
            for thr, dl in ((144, 1), (288, -2), (432, 2)):
                A_(f"v_mov_b32 v{vT1}, {(dl*lda) & 0xffffffff}")
                A_(f"v_cmp_le_u32 vcc, {thr}, v{vT0}")
                A_("s_nop 1")
                A_(f"v_cndmask_b32 v{vDel}, v{vDel}, v{vT1}, vcc")
            for i in range(NCA):
                A_(f"v_add_u32 v{vT1}, v{vAoff[i]}, v{vDel}")
                A_(f"buffer_load_dwordx4 v[{vStgA+4*i}:{vStgA+4*i+3}], v{vT1}, s[{sA}:{sA+3}], s{sKA} offen")
        else:
            for i in range(NCA):
                A_(f"buffer_load_dwordx4 v[{vStgA+4*i}:{vStgA+4*i+3}], v{vAoff[i]}, s[{sA}:{sA+3}], s{sKA} offen")
        for i in range(NCB):
            A_(f"buffer_load_dwordx4 v[{vStgB+4*i}:{vStgB+4*i+3}], v{vBoff[i]}, s[{sW}:{sW+3}], s{sKW} offen")
        A_(f"s_add_u32 s{sKA}, s{sKA}, {BK*2}")
        A_(f"s_add_u32 s{sKW}, s{sKW}, {BK*w_ldb}")
        return X

    def stage_stream(buf, more=False):
        X = []
        A_ = X.append
        vStgA, vStgB = (vStgA_, vStgB_) if buf == 0 else (vStgA2, vStgB2)
        A_(f"s_waitcnt vmcnt({NCA+NCB if more else 0})")
        if pro in ("ln", "lnln"):
            for i in range(NCA):
                for d in range(4):
                    r = vStgA + 4 * i + d
                    A_(f"v_lshlrev_b32 v{vT0}, 16, v{r}")
                    A_(f"v_and_b32 v{vT1}, 0xffff0000, v{r}")
                    A_(f"v_fma_f32 v{vT0}, v{vT0}, v{vSt[i]}, v{vSt[i]+1}")
                    A_(f"v_fma_f32 v{vT1}, v{vT1}, v{vSt[i]}, v{vSt[i]+1}")
                    A_(f"v_cvt_pk_bf16_f32 v{r}, v{vT0}, v{vT1}")
                    if pro == "lnln":
                        A_(f"v_lshlrev_b32 v{vT0}, 16, v{r}")
                        A_(f"v_and_b32 v{vT1}, 0xffff0000, v{r}")
                        A_(f"v_fma_f32 v{vT0}, v{vT0}, v{vSt[i]+2}, v{vSt[i]+3}")
                        A_(f"v_fma_f32 v{vT1}, v{vT1}, v{vSt[i]+2}, v{vSt[i]+3}")
                        A_(f"v_cvt_pk_bf16_f32 v{r}, v{vT0}, v{vT1}")
        for i in range(NCA):
            A_(f"ds_write_b128 v{vAlds}, v[{vStgA+4*i}:{vStgA+4*i+3}] offset:{LDS_A + i*RPI*pitchA}")
        for i in range(NCB):
            A_(f"ds_write_b128 v{vBlds[i]}, v[{vStgB+4*i}:{vStgB+4*i+3}] offset:{LDS_B}")
        dl = (STG if buf == 0 else -STG) & 0xffffffff
        for r in [vAlds] + vBlds:
            A_(f"v_add_u32 v{r}, {dl}, v{r}")
        return X

    def frag_stream(s, fb):
        X = []
        fa, fw = vFA[fb], vFW[fb]
        for i in range(MI):
            X.append(f"ds_read_b128 v[{fa+4*i}:{fa+4*i+3}], v{vArd} offset:{LDS_A + 16*i*pitchA + s*64}")
        for j in range(NJ):
            X.append(f"ds_read_b64_tr_b16 v[{fw+4*j}:{fw+4*j+1}], v{vWrd} offset:{LDS_B + 32*s*pitchB + 32*j}")
            X.append(f"ds_read_b64_tr_b16 v[{fw+4*j+2}:{fw+4*j+3}], v{vWrd} offset:{LDS_B + (32*s+4)*pitchB + 32*j}")
        return X

    def mfma_stream(fb):
        fa, fw = vFA[fb], vFW[fb]
        return [f"v_mfma_f32_16x16x32_bf16 {ACCR(i,j)}, v[{fw+4*j}:{fw+4*j+3}], v[{fa+4*i}:{fa+4*i+3}], {ACCR(i,j)}"
                for i in range(MI) for j in range(NJ)]

    EXPF = os.environ.get('EXPF', '')

    def interleave(M, X):
        if 'nostage' in EXPF:
            X = [x for x in X if x.startswith('ds_read')]
        if 'nofrag' in EXPF:
            X = [x for x in X if not x.startswith('ds_read')]
        if 'nomfma' in EXPF:
            M = M[:1]
        n = len(M)
        per = -(-len(X) // n) if X else 0
        xi = 0
        for m in M:
            a(m)
            for _ in range(per):
                if xi < len(X):
                    a(X[xi]); xi += 1
        while xi < len(X):
            a(X[xi]); xi += 1

    if pro in ("ln", "lnln"):
        a("s_waitcnt lgkmcnt(0)")
    for x in loads_stream(0):
        a(x)
    for x in stage_stream(0):
        a(x)
    for t in range(1, PD + 1):
        if t < NKT:
            for x in loads_stream(t):
                a(x)
    a("s_waitcnt lgkmcnt(0)")
    a("s_barrier")
    for x in frag_stream(0, 0):
        a(x)
    for kt in range(NKT):
        buf = kt & 1
        for s in range(NSUB):
            fb = (kt * NSUB + s) & 1
            X = []
            if s + 1 < NSUB:
                X += frag_stream(s + 1, fb ^ 1)
            else:
                dl = (STG if buf == 0 else -STG) & 0xffffffff
                if kt + 1 < NKT:
                    X += stage_stream(buf ^ 1, more=(PD == 2 and kt + 2 < NKT))
                    if kt + 1 + PD < NKT:
                        X += loads_stream(kt + 1 + PD)
            a("s_waitcnt lgkmcnt(0)")
            interleave(mfma_stream(fb), X)
        if kt + 1 < NKT:
            for r in [vArd, vWrd]:
                a(f"v_add_u32 v{r}, {dl}, v{r}")
            a("s_waitcnt lgkmcnt(0)")
            a("s_barrier")
            for x in frag_stream(0, ((kt + 1) * NSUB) & 1):
                a(x)
    stamp()
    a("s_nop 7")
    a("s_nop 7")
    vE = vStgA
    assert 4 * NCA + 4 * NCB + 4 * MI + 4 * NJ >= 16
    for i in range(MI):
        if i:
            a(f"v_add_u32 v{vCoff}, {16*ldc}, v{vCoff}")
        for j in range(NJ):
            off = 16 * j * esz
            acc = [ACC(i, j, r) for r in range(4)]
            if use_agpr:
                for r in range(4):
                    a(f"v_accvgpr_read_b32 v{vE+8+r}, {acc[r]}")
                acc = [f"v{vE+8+r}" for r in range(4)]
            if epi == "partial":
                a(f"buffer_store_dwordx4 v[{vE+8}:{vE+11}], v{vCoff}, s[{sC}:{sC+3}], 0 offen offset:{off}") if use_agpr else \
                    a(f"buffer_store_dwordx4 {ACCR(i,j)}, v{vCoff}, s[{sC}:{sC+3}], 0 offen offset:{off}")
                if use_agpr:
                    a("s_nop 1")
                continue
            if epi == "gelu":
                a(f"v_cvt_pk_bf16_f32 v{vE+0}, {acc[0]}, {acc[1]}")
                a(f"v_cvt_pk_bf16_f32 v{vE+1}, {acc[2]}, {acc[3]}")
                xs = [vE + 2, vE + 3, vE + 4, vE + 5]
                a(f"v_lshlrev_b32 v{xs[0]}, 16, v{vE+0}")
                a(f"v_and_b32 v{xs[1]}, 0xffff0000, v{vE+0}")
                a(f"v_lshlrev_b32 v{xs[2]}, 16, v{vE+1}")
                a(f"v_and_b32 v{xs[3]}, 0xffff0000, v{vE+1}")
                ts = [vE + 12, vE + 13, vE + 14, vE + 15]
                a(f"s_mov_b32 s{sT}, {f32hex(GELU_C1)}")
                a(f"s_mov_b32 s{sT+1}, {f32hex(GELU_C0)}")
                for r in range(4):
                    a(f"v_mul_f32 v{ts[r]}, v{xs[r]}, v{xs[r]}")
                for r in range(4):
                    a(f"v_mov_b32 v{vE+6}, s{sT+1}")
                    a(f"v_fma_f32 v{ts[r]}, v{ts[r]}, s{sT}, v{vE+6}")
                for r in range(4):
                    a(f"v_mul_f32 v{ts[r]}, v{ts[r]}, v{xs[r]}")
                for r in range(4):
                    a(f"v_exp_f32 v{ts[r]}, v{ts[r]}")
                a("s_nop 0")
                for r in range(4):
                    a(f"v_add_f32 v{ts[r]}, 1.0, v{ts[r]}")
                for r in range(4):
                    a(f"v_rcp_f32 v{ts[r]}, v{ts[r]}")
                a("s_nop 0")
                for r in range(4):
                    a(f"v_mul_f32 v{ts[r]}, v{ts[r]}, v{xs[r]}")
                a(f"v_cvt_pk_bf16_f32 v{vE+0}, v{ts[0]}, v{ts[1]}")
                a(f"v_cvt_pk_bf16_f32 v{vE+1}, v{ts[2]}, v{ts[3]}")
            elif epi == "store":
                a(f"v_cvt_pk_bf16_f32 v{vE+0}, {acc[0]}, {acc[1]}")
                a(f"v_cvt_pk_bf16_f32 v{vE+1}, {acc[2]}, {acc[3]}")
            elif epi == "res1":
                a(f"buffer_load_dwordx2 v[{vE+2}:{vE+3}], v{vCoff}, s[{sR1}:{sR1+3}], 0 offen offset:{off}")
                a(f"v_cvt_pk_bf16_f32 v{vE+0}, {acc[0]}, {acc[1]}")
                a(f"v_cvt_pk_bf16_f32 v{vE+1}, {acc[2]}, {acc[3]}")
                a("s_waitcnt vmcnt(0)")
                for d in range(2):
                    a(f"v_lshlrev_b32 v{vE+4}, 16, v{vE+d}")
                    a(f"v_and_b32 v{vE+5}, 0xffff0000, v{vE+d}")
                    a(f"v_lshlrev_b32 v{vE+6}, 16, v{vE+2+d}")
                    a(f"v_and_b32 v{vE+7}, 0xffff0000, v{vE+2+d}")
                    a(f"v_add_f32 v{vE+4}, v{vE+4}, v{vE+6}")
                    a(f"v_add_f32 v{vE+5}, v{vE+5}, v{vE+7}")
                    a(f"v_cvt_pk_bf16_f32 v{vE+d}, v{vE+4}, v{vE+5}")
            a(f"buffer_store_dwordx2 v[{vE}:{vE+1}], v{vCoff}, s[{sC}:{sC+3}], 0 offen offset:{off}")
            a("s_nop 1")
    a("s_waitcnt vmcnt(0)")
    if INSTR:
        stamp()
        a(f"s_cmp_lg_u32 s2, {INSTR-1}")
        a(f"s_cbranch_scc1 {END}")
        a(f"s_load_dwordx2 s[4:5], s[0:1], {ARG_DBG}")
        a("s_waitcnt lgkmcnt(0)")
        srd(a, 8, 4, 0, 256)
        for i in range(tsn[0]):
            a(f"v_mov_b32 v1, s{60+2*i}")
            a(f"v_mov_b32 v2, {4*i}")
            a(f"buffer_store_dword v1, v2, s[8:11], 0 offen")
        a("s_waitcnt vmcnt(0)")
    a.label(END)
    a("s_endpgm")
    nvg = nv[0]
    if use_agpr:
        accum = (nvg + 7) // 8 * 8
        kernel_footer(a, name, accum + MI * NJ * 4, 80, accum)
    else:
        kernel_footer(a, name, nvg, 80)
    return dict(name=name, grid=NWG, block=256, lds=lds_total, vgpr=nvg)


def gen_attn(a, name):
    KT = 64
    NIT = S // KT
    pK, pV = 80, 64
    szK, szV = KT * pK, KT * pV
    STG = szK + szV
    lds_total = 2 * STG
    SCALE = (DH ** -0.5) * math.log2(math.e)
    kernel_header(a, name)
    END = f"{name}_end"
    a(f"s_cmp_ge_u32 s2, {H * (S // 128)}")
    a(f"s_cbranch_scc1 {END}")
    a(f"s_load_dwordx2 s[4:5], s[0:1], {ARG_WS}")
    sH, sQB = 6, 7
    a(f"s_and_b32 s{sH}, s2, 31")
    a(f"s_lshr_b32 s{sQB}, s2, 5")
    a("s_waitcnt lgkmcnt(0)")
    sQ, sO = 8, 12
    srd(a, sQ, 4, WS_QKV, SZ_QKV)
    srd(a, sO, 4, WS_O, SZ_SD)
    sHB, sKoff, sC, sIt = 16, 17, 18, 19
    a(f"s_mul_i32 s{sHB}, s{sH}, {DH*2}")
    a(f"s_mov_b32 s{sC}, {f32hex(SCALE)}")
    vLane, vT0, vT1, vT2, vT3 = 1, 2, 3, 4, 5
    vGo4, vGo1 = 6, 7
    vW4, vW1 = 8, 9
    vKrd, vVrd = 10, 11
    vM, vAl, vMc = 12, 13, 14
    vOoff = 15
    vStg = 16
    vQf = 24
    vKf = 32
    vVf = 48
    vP = 64
    vSS = 80
    vO = 112
    NV = 128
    a(f"v_and_b32 v{vLane}, 63, v0")
    per = 2 * STG // 256
    assert per % 16 == 0 or True
    a(f"v_mov_b32 v{vStg}, 0")
    a(f"v_mov_b32 v{vStg+1}, 0")
    a(f"v_mov_b32 v{vStg+2}, 0")
    a(f"v_mov_b32 v{vStg+3}, 0")
    nch = (2 * STG) // 16
    for i in range(0, nch, 256):
        a(f"v_add_u32 v{vT0}, {i}, v0")
        a(f"v_lshlrev_b32 v{vT0}, 4, v{vT0}")
        if i + 256 > nch:
            a(f"v_cmp_gt_u32 vcc, {nch - i}, v0")
            a(f"s_and_saveexec_b64 s[20:21], vcc")
            a(f"ds_write_b128 v{vT0}, v[{vStg}:{vStg+3}]")
            a(f"s_mov_b64 exec, s[20:21]")
        else:
            a(f"ds_write_b128 v{vT0}, v[{vStg}:{vStg+3}]")
    a("s_waitcnt lgkmcnt(0)")
    a("s_barrier")
    a(f"v_cmp_gt_u32 vcc, 128, v0")
    a(f"s_and_saveexec_b64 s[20:21], vcc")
    a(f"v_lshrrev_b32 v{vT0}, 6, v0")
    a(f"v_mul_u32_u24 v{vT0}, {STG}, v{vT0}")
    a(f"v_mul_u32_u24 v{vT1}, {pV}, v{vLane}")
    a(f"v_add_u32 v{vT0}, v{vT0}, v{vT1}")
    a(f"v_mov_b32 v{vT1}, 0x3f80")
    a(f"ds_write_b16 v{vT0}, v{vT1} offset:{szK + 36}")
    a(f"s_mov_b64 exec, s[20:21]")
    a(f"v_lshrrev_b32 v{vT0}, 2, v0")
    a(f"v_and_b32 v{vT1}, 3, v0")
    a(f"v_mul_u32_u24 v{vGo4}, {3*D*2}, v{vT0}")
    a(f"v_add_u32 v{vGo4}, s{sHB}, v{vGo4}")
    a(f"v_lshrrev_b32 v{vT2}, 1, v{vT1}")
    a(f"v_mul_u32_u24 v{vT3}, {D*2}, v{vT2}")
    a(f"v_add_u32 v{vGo4}, v{vGo4}, v{vT3}")
    a(f"v_add_u32 v{vGo1}, {D*2 + 32}, v{vGo4}")
    a(f"v_and_b32 v{vT3}, 1, v{vT1}")
    a(f"v_lshlrev_b32 v{vT3}, 4, v{vT3}")
    a(f"v_add_u32 v{vGo4}, v{vGo4}, v{vT3}")
    a(f"v_add_u32 v{vGo4}, {D*2}, v{vGo4}")
    a(f"v_mul_u32_u24 v{vW4}, {pK}, v{vT0}")
    a(f"v_mul_u32_u24 v{vW1}, {pV}, v{vT0}")
    a(f"v_add_u32 v{vW1}, {szK}, v{vW1}")
    a(f"v_cmp_eq_u32 vcc, 1, v{vT2}")
    a("s_nop 1")
    a(f"v_cndmask_b32 v{vW4}, v{vW4}, v{vW1}, vcc")
    a(f"v_add_u32 v{vW1}, 32, v{vW4}")
    a(f"v_add_u32 v{vW4}, v{vW4}, v{vT3}")
    a(f"v_and_b32 v{vT0}, 31, v{vLane}")
    a(f"v_mul_u32_u24 v{vKrd}, {pK}, v{vT0}")
    a(f"v_lshrrev_b32 v{vT1}, 5, v{vLane}")
    a(f"v_lshlrev_b32 v{vT2}, 4, v{vT1}")
    a(f"v_add_u32 v{vKrd}, v{vKrd}, v{vT2}")
    a(f"v_and_b32 v{vT0}, 15, v{vLane}")
    a(f"v_lshrrev_b32 v{vT0}, 2, v{vT0}")
    a(f"v_lshlrev_b32 v{vT2}, 2, v{vT1}")
    a(f"v_add_u32 v{vT0}, v{vT0}, v{vT2}")
    a(f"v_mul_u32_u24 v{vVrd}, {pV}, v{vT0}")
    a(f"v_lshrrev_b32 v{vT0}, 4, v{vLane}")
    a(f"v_and_b32 v{vT0}, 1, v{vT0}")
    a(f"v_lshlrev_b32 v{vT0}, 5, v{vT0}")
    a(f"v_and_b32 v{vT2}, 3, v{vLane}")
    a(f"v_lshlrev_b32 v{vT2}, 3, v{vT2}")
    a(f"v_add_u32 v{vVrd}, v{vVrd}, v{vT0}")
    a(f"v_add_u32 v{vVrd}, v{vVrd}, v{vT2}")
    a(f"v_add_u32 v{vVrd}, {szK}, v{vVrd}")
    a(f"v_lshrrev_b32 v{vT0}, 6, v0")
    a(f"v_lshlrev_b32 v{vT0}, 5, v{vT0}")
    a(f"v_and_b32 v{vT2}, 31, v{vLane}")
    a(f"v_add_u32 v{vT0}, v{vT0}, v{vT2}")
    a(f"s_lshl_b32 s20, s{sQB}, 7")
    a(f"v_add_u32 v{vT0}, s20, v{vT0}")
    a(f"v_mul_u32_u24 v{vOoff}, {D*2}, v{vT0}")
    a(f"v_add_u32 v{vOoff}, s{sHB}, v{vOoff}")
    a(f"v_mul_u32_u24 v{vT0}, {3*D*2}, v{vT0}")
    a(f"v_add_u32 v{vT0}, s{sHB}, v{vT0}")
    a(f"v_lshlrev_b32 v{vT2}, 4, v{vT1}")
    a(f"v_add_u32 v{vT2}, v{vT0}, v{vT2}")
    a(f"buffer_load_dwordx4 v[{vQf}:{vQf+3}], v{vT2}, s[{sQ}:{sQ+3}], 0 offen")
    a(f"buffer_load_dword v{vQf+4}, v{vT0}, s[{sQ}:{sQ+3}], 0 offen offset:32")
    a(f"v_mov_b32 v{vQf+5}, 0")
    a(f"v_mov_b32 v{vQf+6}, 0")
    a(f"v_mov_b32 v{vQf+7}, 0")
    a("s_waitcnt vmcnt(0)")
    a(f"v_cmp_eq_u32 vcc, 0, v{vT1}")
    a("s_nop 1")
    a(f"v_cndmask_b32 v{vQf+4}, 0, v{vQf+4}, vcc")
    a(f"v_mov_b32 v{vM}, 0xff800000")
    for r in range(16):
        a(f"v_mov_b32 v{vO+r}, 0")
    a(f"s_mov_b32 s{sKoff}, 0")

    def loads():
        a(f"buffer_load_dwordx4 v[{vStg}:{vStg+3}], v{vGo4}, s[{sQ}:{sQ+3}], s{sKoff} offen")
        a(f"buffer_load_dword v{vStg+4}, v{vGo1}, s[{sQ}:{sQ+3}], s{sKoff} offen")
        a(f"s_add_u32 s{sKoff}, s{sKoff}, {KT*3*D*2}")

    def stage(buf):
        a("s_waitcnt vmcnt(0)")
        a(f"ds_write_b128 v{vW4}, v[{vStg}:{vStg+3}] offset:{buf*STG}")
        a(f"ds_write_b32 v{vW1}, v{vStg+4} offset:{buf*STG}")

    def compute(buf):
        B = buf * STG
        for kb in range(2):
            for dh in range(2):
                r = vKf + (kb * 2 + dh) * 4
                a(f"ds_read_b128 v[{r}:{r+3}], v{vKrd} offset:{B + kb*32*pK + dh*32}")
        for kb in range(4):
            r = vVf + kb * 4
            a(f"ds_read_b64_tr_b16 v[{r}:{r+1}], v{vVrd} offset:{B + kb*16*pV}")
            a(f"ds_read_b64_tr_b16 v[{r+2}:{r+3}], v{vVrd} offset:{B + (kb*16+8)*pV}")
        a("s_waitcnt lgkmcnt(8)")
        for kb in range(2):
            sr = vSS + kb * 16
            for dh in range(2):
                r = vKf + (kb * 2 + dh) * 4
                c = "0" if dh == 0 else f"v[{sr}:{sr+15}]"
                a(f"v_mfma_f32_32x32x16_bf16 v[{sr}:{sr+15}], v[{r}:{r+3}], v[{vQf+4*dh}:{vQf+4*dh+3}], {c}")
        a("s_nop 7")
        a("s_nop 3")
        a(f"v_max3_f32 v{vT0}, v{vSS}, v{vSS+1}, v{vSS+2}")
        for r in range(3, 31, 2):
            a(f"v_max3_f32 v{vT0}, v{vT0}, v{vSS+r}, v{vSS+r+1}")
        a(f"v_max_f32 v{vT0}, v{vT0}, v{vSS+31}")
        a(f"v_mov_b32 v{vT1}, v{vT0}")
        a("s_nop 1")
        a(f"v_permlane32_swap_b32 v{vT0}, v{vT1}")
        a("s_nop 1")
        a(f"v_max_f32 v{vT0}, v{vT0}, v{vT1}")
        a(f"v_max_f32 v{vT0}, v{vT0}, v{vM}")
        a(f"v_sub_f32 v{vT1}, v{vM}, v{vT0}")
        a(f"v_mul_f32 v{vT1}, s{sC}, v{vT1}")
        a(f"v_exp_f32 v{vAl}, v{vT1}")
        a(f"v_mov_b32 v{vM}, v{vT0}")
        a(f"v_mul_f32 v{vMc}, s{sC}, v{vT0}")
        for r in range(32):
            a(f"v_fma_f32 v{vSS+r}, v{vSS+r}, s{sC}, -v{vMc}")
        for r in range(32):
            a(f"v_exp_f32 v{vSS+r}, v{vSS+r}")
        for r in range(16):
            a(f"v_mul_f32 v{vO+r}, v{vO+r}, v{vAl}")
        for r in range(16):
            a(f"v_cvt_pk_bf16_f32 v{vP+r}, v{vSS+2*r}, v{vSS+2*r+1}")
        a("s_waitcnt lgkmcnt(0)")
        a("s_nop 1")
        for kb in range(4):
            a(f"v_mfma_f32_32x32x16_bf16 v[{vO}:{vO+15}], v[{vVf+4*kb}:{vVf+4*kb+3}], v[{vP+4*kb}:{vP+4*kb+3}], v[{vO}:{vO+15}]")

    loads()
    stage(0)
    loads()
    a("s_waitcnt lgkmcnt(0)")
    a("s_barrier")
    a(f"s_mov_b32 s{sIt}, 0")
    LOOP = f"{name}_loop"
    a.label(LOOP)
    compute(0)
    stage(1)
    loads()
    a("s_waitcnt lgkmcnt(0)")
    a("s_barrier")
    compute(1)
    a(f"s_add_u32 s{sIt}, s{sIt}, 2")
    a(f"s_cmp_ge_u32 s{sIt}, {NIT}")
    a(f"s_cbranch_scc1 {name}_fin")
    stage(0)
    loads()
    a("s_waitcnt lgkmcnt(0)")
    a("s_barrier")
    a(f"s_branch {LOOP}")
    a.label(f"{name}_fin")
    a("s_waitcnt vmcnt(0)")
    a("s_nop 7")
    a("s_nop 7")
    a(f"v_mov_b32 v{vT0}, v{vO+10}")
    a(f"v_mov_b32 v{vT1}, v{vO+10}")
    a("s_nop 1")
    a(f"v_permlane32_swap_b32 v{vT0}, v{vT1}")
    a("s_nop 1")
    a(f"v_rcp_f32 v{vT0}, v{vT0}")
    a("s_nop 0")
    for r in range(10):
        a(f"v_mul_f32 v{vO+r}, v{vO+r}, v{vT0}")
    for r in range(5):
        a(f"v_cvt_pk_bf16_f32 v{vP+r}, v{vO+2*r}, v{vO+2*r+1}")
    a(f"v_lshrrev_b32 v{vT1}, 5, v{vLane}")
    a(f"v_lshlrev_b32 v{vT1}, 3, v{vT1}")
    a(f"v_add_u32 v{vT1}, v{vOoff}, v{vT1}")
    a(f"buffer_store_dwordx2 v[{vP}:{vP+1}], v{vT1}, s[{sO}:{sO+3}], 0 offen")
    a(f"buffer_store_dwordx2 v[{vP+2}:{vP+3}], v{vT1}, s[{sO}:{sO+3}], 0 offen offset:16")
    a(f"v_cmp_gt_u32 vcc, 32, v{vLane}")
    a(f"s_and_saveexec_b64 s[20:21], vcc")
    a(f"buffer_store_dword v{vP+4}, v{vT1}, s[{sO}:{sO+3}], 0 offen offset:32")
    a("s_waitcnt vmcnt(0)")
    a.label(END)
    a("s_endpgm")
    kernel_footer(a, name, NV, 32)
    return dict(name=name, grid=H * (S // 128), block=256, lds=lds_total, vgpr=NV)


def gen_reduce(a, name):
    nthr = S * D // 8
    NWG = nthr // 256
    kernel_header(a, name)
    END = f"{name}_end"
    a(f"s_cmp_ge_u32 s2, {NWG}")
    a(f"s_cbranch_scc1 {END}")
    a(f"s_load_dwordx2 s[4:5], s[0:1], {ARG_WS}")
    a(f"s_load_dwordx2 s[6:7], s[0:1], {ARG_OUT}")
    a("s_waitcnt lgkmcnt(0)")
    srd(a, 8, 4, WS_PART, SZ_PART)
    srd(a, 12, 4, WS_H, SZ_SD)
    srd(a, 16, 4, WS_X1, SZ_SD)
    srd(a, 20, 6, 0, SZ_SD)
    a(f"s_lshl_b32 s24, s2, 8")
    a(f"v_add_u32 v1, s24, v0")
    a(f"v_lshlrev_b32 v2, 4, v1")
    a(f"v_lshlrev_b32 v3, 5, v1")
    for k in range(SPLITK):
        a(f"v_add_u32 v4, {k*S*D*4}, v3")
        a(f"buffer_load_dwordx4 v[{8+8*k}:{11+8*k}], v4, s[8:11], 0 offen")
        a(f"buffer_load_dwordx4 v[{12+8*k}:{15+8*k}], v4, s[8:11], 0 offen offset:16")
    a(f"buffer_load_dwordx4 v[40:43], v2, s[12:15], 0 offen")
    a(f"buffer_load_dwordx4 v[44:47], v2, s[16:19], 0 offen")
    a("s_waitcnt vmcnt(0)")
    for e in range(8):
        for k in range(1, SPLITK):
            a(f"v_add_f32 v{8+e}, v{8+e}, v{8+8*k+e}")
    for d in range(4):
        a(f"v_cvt_pk_bf16_f32 v48, v{8+2*d}, v{9+2*d}")
        a(f"v_lshlrev_b32 v49, 16, v48")
        a(f"v_and_b32 v50, 0xffff0000, v48")
        a(f"v_lshlrev_b32 v51, 16, v{44+d}")
        a(f"v_and_b32 v52, 0xffff0000, v{44+d}")
        a(f"v_add_f32 v49, v49, v51")
        a(f"v_add_f32 v50, v50, v52")
        a(f"v_cvt_pk_bf16_f32 v48, v49, v50")
        a(f"v_lshlrev_b32 v49, 16, v48")
        a(f"v_and_b32 v50, 0xffff0000, v48")
        a(f"v_lshlrev_b32 v51, 16, v{40+d}")
        a(f"v_and_b32 v52, 0xffff0000, v{40+d}")
        a(f"v_add_f32 v49, v49, v51")
        a(f"v_add_f32 v50, v50, v52")
        a(f"v_cvt_pk_bf16_f32 v{56+d}, v49, v50")
    a(f"buffer_store_dwordx4 v[56:59], v2, s[20:23], 0 offen")
    a("s_waitcnt vmcnt(0)")
    a.label(END)
    a("s_endpgm")
    kernel_footer(a, name, 64, 32)
    return dict(name=name, grid=NWG, block=256, lds=0, vgpr=64)


WS_N1 = WS_PART + SZ_PART
SZ_END = WS_N1 + SZ_SD

def gen_ln(a, name, src, dst1, dst2=None):
    NWG = S // 32
    kernel_header(a, name)
    END = f"{name}_end"
    a(f"s_cmp_ge_u32 s2, {NWG}")
    a(f"s_cbranch_scc1 {END}")
    a(f"s_load_dwordx2 s[4:5], s[0:1], {src[0]}")
    a(f"s_load_dwordx2 s[6:7], s[0:1], {ARG_WS}")
    a("s_waitcnt lgkmcnt(0)")
    srd(a, 8, 4, src[1], SZ_SD)
    srd(a, 12, 6, dst1, SZ_SD)
    if dst2 is not None:
        srd(a, 16, 6, dst2, SZ_SD)
    vD, vS, vQ, vU, vX, vOff, vOne = 8, 1, 2, 3, 4, 5, 6
    a(f"s_lshl_b32 s20, s2, 5")
    a(f"v_lshrrev_b32 v{vOff}, 3, v0")
    a(f"v_add_u32 v{vOff}, s20, v{vOff}")
    a(f"v_mul_u32_u24 v{vOff}, {D*2}, v{vOff}")
    a(f"v_and_b32 v{vX}, 7, v0")
    a(f"v_lshlrev_b32 v{vX}, 4, v{vX}")
    a(f"v_add_u32 v{vOff}, v{vOff}, v{vX}")
    for i in range(9):
        a(f"buffer_load_dwordx4 v[{vD+4*i}:{vD+4*i+3}], v{vOff}, s[8:11], 0 offen offset:{i*128}")
    a(f"v_mov_b32 v{vOne}, 0x3f803f80")
    a("s_waitcnt vmcnt(0)")

    def reduce8(v):
        a(f"s_nop 1")
        a(f"v_add_f32_dpp v{v}, v{v}, v{v} quad_perm:[1,0,3,2] row_mask:0xf bank_mask:0xf")
        a(f"s_nop 1")
        a(f"v_add_f32_dpp v{v}, v{v}, v{v} quad_perm:[2,3,0,1] row_mask:0xf bank_mask:0xf")
        a(f"s_nop 1")
        a(f"v_add_f32_dpp v{v}, v{v}, v{v} row_half_mirror row_mask:0xf bank_mask:0xf")

    def norm(srdo):
        a(f"v_mov_b32 v{vS}, 0")
        for i in range(36):
            a(f"v_lshlrev_b32 v{vU}, 16, v{vD+i}")
            a(f"v_and_b32 v{vX}, 0xffff0000, v{vD+i}")
            a(f"v_add_f32 v{vS}, v{vS}, v{vU}")
            a(f"v_add_f32 v{vS}, v{vS}, v{vX}")
        reduce8(vS)
        a(f"v_mul_f32 v{vS}, {f32hex(1.0/D)}, v{vS}")
        a(f"v_mov_b32 v{vQ}, 0")
        for i in range(36):
            a(f"v_lshlrev_b32 v{vU}, 16, v{vD+i}")
            a(f"v_and_b32 v{vX}, 0xffff0000, v{vD+i}")
            a(f"v_sub_f32 v{vU}, v{vU}, v{vS}")
            a(f"v_sub_f32 v{vX}, v{vX}, v{vS}")
            a(f"v_fmac_f32 v{vQ}, v{vU}, v{vU}")
            a(f"v_fmac_f32 v{vQ}, v{vX}, v{vX}")
        reduce8(vQ)
        a(f"v_mul_f32 v{vQ}, {f32hex(1.0/D)}, v{vQ}")
        a(f"v_add_f32 v{vQ}, {f32hex(1e-5)}, v{vQ}")
        a(f"v_rsq_f32 v{vQ}, v{vQ}")
        a("s_nop 1")
        a(f"v_mul_f32 v{vS}, v{vS}, v{vQ}")
        a(f"v_sub_f32 v{vS}, 0, v{vS}")
        for i in range(36):
            a(f"v_lshlrev_b32 v{vU}, 16, v{vD+i}")
            a(f"v_and_b32 v{vX}, 0xffff0000, v{vD+i}")
            a(f"v_fma_f32 v{vU}, v{vU}, v{vQ}, v{vS}")
            a(f"v_fma_f32 v{vX}, v{vX}, v{vQ}, v{vS}")
            a(f"v_cvt_pk_bf16_f32 v{vD+i}, v{vU}, v{vX}")
        for i in range(9):
            a(f"buffer_store_dwordx4 v[{vD+4*i}:{vD+4*i+3}], v{vOff}, s[{srdo}:{srdo+3}], 0 offen offset:{i*128}")
        a("s_waitcnt vmcnt(0)")
    norm(12)
    if dst2 is not None:
        norm(16)
    a.label(END)
    a("s_endpgm")
    kernel_footer(a, name, 48, 32)
    return dict(name=name, grid=NWG, block=256, lds=0, vgpr=48)


def main():
    a = Asm()
    launches = []
    launches.append(gen_ln(a, "k_ln1_kernel", (ARG_X, 0), WS_N1))
    launches.append(gen_gemm(a, "k_qkv_kernel", K=D, N=3 * D, BM=128, BN=96, a_arg=ARG_WS, a_off=WS_N1, a_size=SZ_SD, lda=D * 2,
                             w_arg=ARG_WQKV, w_ldb=3 * D * 2, pro=None, epi="store", c_arg=ARG_WS, c_off=WS_QKV,
                             c_size=SZ_QKV, ldc=3 * D * 2))
    launches.append(gen_attn(a, "k_attn_kernel"))
    launches.append(gen_gemm(a, "k_wo_kernel", K=D, N=D, BM=64, BN=64, a_arg=ARG_WS, a_off=WS_O, a_size=SZ_SD, lda=D * 2,
                             w_arg=ARG_WO, w_ldb=D * 2, pro=None, epi="res1", c_arg=ARG_WS, c_off=WS_H,
                             c_size=SZ_SD, ldc=D * 2, r1=(ARG_X, 0, SZ_SD)))
    launches.append(gen_ln(a, "k_ln2_kernel", (ARG_WS, WS_H), WS_XB, WS_N1))
    launches.append(gen_gemm(a, "k_w1_kernel", K=D, N=D, BM=64, BN=64, a_arg=ARG_WS, a_off=WS_N1, a_size=SZ_SD, lda=D * 2,
                             w_arg=ARG_W1, w_ldb=D * 2, pro=None, epi="gelu", c_arg=ARG_WS, c_off=WS_G,
                             c_size=SZ_SD, ldc=D * 2))
    launches.append(gen_gemm(a, "k_w2_kernel", K=D, N=D, BM=64, BN=64, a_arg=ARG_WS, a_off=WS_G, a_size=SZ_SD, lda=D * 2,
                             w_arg=ARG_W2, w_ldb=D * 2, pro="shift", epi="res1", c_arg=ARG_WS, c_off=WS_X1,
                             c_size=SZ_SD, ldc=D * 2, r1=(ARG_WS, WS_XB, SZ_SD)))
    launches.append(gen_ln(a, "k_ln3_kernel", (ARG_WS, WS_X1), WS_N1))
    launches.append(gen_gemm(a, "k_w3_kernel", K=D, N=F, BM=128, BN=96, a_arg=ARG_WS, a_off=WS_N1, a_size=SZ_SD, lda=D * 2,
                             w_arg=ARG_W3, w_ldb=F * 2, pro=None, epi="gelu", c_arg=ARG_WS, c_off=WS_H3,
                             c_size=SZ_H3, ldc=F * 2))
    launches.append(gen_gemm(a, "k_w4_kernel", K=F, N=D, BM=128, BN=96, a_arg=ARG_WS, a_off=WS_H3, a_size=SZ_H3, lda=F * 2,
                             w_arg=ARG_W4, w_ldb=D * 2, pro=None, epi="partial", c_arg=ARG_WS, c_off=WS_PART,
                             c_size=SZ_PART, ldc=D * 4, splitk=SPLITK))
    launches.append(gen_reduce(a, "sequential_preLN__mha_block__mixer_s_mlp__prompt_kernel"))
    hdr = ["; generated by dev/gen.py"]
    for l in launches:
        hdr.append(f"; @launch kernel={l['name']} grid=({l['grid']},1,1) block=({l['block']},1,1) lds={l['lds']}")
    hdr.append('.amdgcn_target "amdgcn-amd-amdhsa--gfx950"')
    hdr.append(".text")
    out = "\n".join(hdr) + "\n" + a.text()
    path = sys.argv[1] if len(sys.argv) > 1 else "out.s"
    open(path, "w").write(out)
    for l in launches:
        print(l)


if __name__ == "__main__":
    main()
```
